```python
import torch

def _softmax(x, axis=-1):
    return torch.softmax(x, dim=axis)
def _gelu(x):
    return torch.nn.functional.gelu(x, approximate="tanh")
def _silu(x):
    return torch.nn.functional.silu(x)
def _sigmoid(x):
    return torch.sigmoid(x)
def _layernorm(x, axis=-1, eps=1e-5):
    m = x.mean(dim=axis, keepdim=True)
    v = x.var(dim=axis, keepdim=True, unbiased=False)
    return (x - m) / torch.sqrt(v + eps)
def _scatter_add(tgt, idx, src, axis=0):
    return tgt.clone().index_add_(axis, idx, src)
def _segment_sum(src, seg, n):
    out = torch.zeros((n,) + src.shape[1:], dtype=src.dtype)
    return out.index_add_(0, seg, src)
def _pad(x, pw):
    flat = tuple(v for pair in reversed(pw) for v in pair)
    return torch.nn.functional.pad(x, flat)

kernel_name = 'sequential_preLN__sliding_block_cached__dense_activation_squared_relu__decode'

def setup_inputs():

    _w = (lambda a: (lambda t: t.to(torch.bfloat16) if t.is_floating_point() else t)(torch.as_tensor(a)))
    def _A_setup():
        B, Sq, D = 1, 1, 512
        Hq, Hkv, Sk, Dh = 32, 32, 4096, 128
        assert Hq % Hkv == 0, (Hq, Hkv)
        return {
            "x": _w((lambda *s: torch.randn(*s, dtype=torch.bfloat16) * 0.05)(B, Sq, D)),
            "k_cache": _w((lambda *s: torch.randn(*s, dtype=torch.bfloat16) * 3.2)(B, Hkv, Sk, Dh)),
            "v_cache": _w((lambda *s: torch.randn(*s, dtype=torch.bfloat16) * 0.4)(B, Hkv, Sk, Dh)),
            "wq": _w((lambda *s: torch.randn(*s, dtype=torch.bfloat16) * 3.2)(D, Hq * Dh) * (D ** -0.5)),
            "wo": _w((lambda *s: torch.randn(*s, dtype=torch.bfloat16) * 0.4)(Hq * Dh, D) * ((Hq * Dh) ** -0.5)),
        }
    _A_in = _A_setup()

    def _B_setup():
        B, S, D, F = 1, 1, 512, 1376
        return {
            "x": _w((lambda *s: torch.randn(*s, dtype=torch.bfloat16) * 0.05)(B, S, D)),
            "w1": _w((lambda *s: torch.randn(*s, dtype=torch.bfloat16) * 0.05)(D, F)),
            "b1": _w((lambda *s: torch.randn(*s, dtype=torch.bfloat16) * 0.4)(F)),
            "w2": _w((lambda *s: torch.randn(*s, dtype=torch.bfloat16) * 0.05)(F, D)),
            "b2": _w((lambda *s: torch.randn(*s, dtype=torch.bfloat16) * 1.6)(D)),
        }
    _B_in = _B_setup()

    return {
        "A_x": _A_in["x"],
        "A_k_cache": _A_in["k_cache"],
        "A_v_cache": _A_in["v_cache"],
        "A_wq": _A_in["wq"],
        "A_wo": _A_in["wo"],
        "B_x": _B_in["x"],
        "B_w1": _B_in["w1"],
        "B_b1": _B_in["b1"],
        "B_w2": _B_in["w2"],
        "B_b2": _B_in["b2"],
    }

def reference(A_x, A_k_cache, A_v_cache, A_wq, A_wo, B_x, B_w1, B_b1, B_w2, B_b2):
    def _A_ref(x, k_cache, v_cache, wq, wo):
        B, Sq, D = x.shape
        Hq, Dh = 32, 128
        Hkv, Sk = k_cache.shape[1], k_cache.shape[2]
        W = min(4096, max(256, Sk // 4))
        rep = Hq // Hkv
        q = (lambda x, *d: x.permute(*d))((x @ wq).reshape(B, Sq, Hq, Dh), 0, 2, 1, 3)
        k = (lambda x, n, axis: torch.repeat_interleave(x, n, dim=axis))(k_cache[:, :, Sk - W:, :], rep, axis=1)
        v = (lambda x, n, axis: torch.repeat_interleave(x, n, dim=axis))(v_cache[:, :, Sk - W:, :], rep, axis=1)
        scores = torch.einsum("bhqd,bhkd->bhqk", q, k) * (Dh ** -0.5)
        p = _softmax(scores, axis=-1)
        o = torch.einsum("bhqk,bhkd->bhqd", p, v)
        return (lambda x, *d: x.permute(*d))(o, 0, 2, 1, 3).reshape(B, Sq, Hq * Dh) @ wo

    def _B_ref(x, w1, b1, w2, b2):
        h = torch.einsum("bsd,df->bsf", x, w1) + b1
        zero = torch.zeros_like(h)
        r = torch.where(h > zero, h, zero)
        h = r * r
        out = torch.einsum("bsf,fd->bsd", h, w2) + b2
        return out

    x = A_x
    h = x + _A_ref(_layernorm(x, axis=-1), A_k_cache, A_v_cache, A_wq, A_wo)
    h2 = h + _B_ref(_layernorm(h, axis=-1), B_w1, B_b1, B_w2, B_b2)
    return h2
```

```python
import re
NAME = 'sequential_preLN__sliding_block_cached__dense_activation_squared_relu__decode'

def regs_of(tok):
    tok = tok.strip()
    m = re.fullmatch(r'([vs])(\d+)', tok)
    if m: return [(m.group(1), int(m.group(2)))]
    m = re.fullmatch(r'([vs])\[(\d+):(\d+)\]', tok)
    if m: return [(m.group(1), i) for i in range(int(m.group(2)), int(m.group(3)) + 1)]
    if tok == 'vcc': return [('s', 'vcc')]
    if tok == 'exec': return [('s', 'exec')]
    if tok == 'm0': return [('s', 'm0')]
    return []

TRANS = ('v_exp_f32', 'v_log_f32', 'v_rcp_f32', 'v_rsq_f32', 'v_sqrt_f32')
class Ins:
    def __init__(s, text):
        s.text = text
        t = text.split(';')[0].strip()
        s.label = t.endswith(':')
        s.dirv = t.startswith('.') or t == ''
        parts = t.split(None, 1)
        s.op = parts[0] if parts else ''
        rest = parts[1] if len(parts) > 1 else ''
        ops = [o.strip() for o in re.split(r',\s*(?![^\[]*\])', rest)] if rest else []
        if ops:
            ops[-1] = ops[-1].split()[0]
        s.ops = ops
        op = s.op
        s.mfma = op.startswith('v_mfma')
        s.valu = op.startswith('v_') and not s.mfma
        s.dpp = s.valu and bool(re.search(r'quad_perm|row_|wave_', t))
        s.trans = any(op.startswith(x) for x in TRANS)
        s.dot = op.startswith('v_dot')
        s.perml = op.startswith('v_permlane')
        s.rdl = op.startswith('v_readlane') or op.startswith('v_readfirstlane') or op.startswith('v_writelane')
        s.vmem = op.startswith('global_') or op.startswith('buffer_')
        s.ds = op.startswith('ds_')
        s.salu = op.startswith('s_')
        s.ldsdma = s.vmem and ('_lds_' in op)
        s.opsel = 'op_sel' in t or 'dst_sel' in t
        s.w = []; s.r = []; s.srcC = []; s.srcAB = []; s.stdata = []
        R = [regs_of(o) for o in ops]
        if s.mfma:
            s.w = R[0]; s.srcAB = R[1] + R[2]; s.srcC = R[3]; s.r = s.srcAB + s.srcC
        elif s.valu:
            if s.perml:
                s.w = R[0] + R[1]; s.r = R[0] + R[1]
            else:
                s.w = list(R[0]); s.r = sum(R[1:], [])
                if op.startswith('v_cmp') and False: pass
                if s.dpp or op.startswith('v_fmac') or op.startswith('v_writelane') or op.startswith('v_dot2c'): s.r += R[0]
                if s.dot: s.srcC = R[3] if len(R) > 3 else R[0]; s.srcAB = R[1] + R[2]
                if op.startswith('v_cmpx'): s.w.append(('s', 'exec'))
        elif s.vmem:
            if 'store' in op:
                s.r = sum(R, [])
                if 'x3' in op or 'x4' in op: s.stdata = R[1] if op.startswith('global') else R[0]
            elif s.ldsdma:
                s.r = sum(R, [])
            else:
                s.w = R[0]; s.r = sum(R[1:], [])
        elif s.ds:
            if 'write' in op: s.r = sum(R, [])
            else: s.w = R[0]; s.r = sum(R[1:], [])
        elif s.salu and ops:
            if op.startswith(('s_cmp', 's_cbranch', 's_branch', 's_waitcnt', 's_nop', 's_bitcmp')): s.r = sum(R, [])
            else: s.w = R[0]; s.r = sum(R[1:], [])
        s.states = 1
        if op == 's_nop': s.states = int(ops[0]) + 1
        if s.label or s.dirv: s.states = 0

def need(p, c):
    n = 0
    pw = set(p.w); cr = set(c.r); cw = set(c.w)
    pv = {x for x in pw if x[0] == 'v'}; ps = {x for x in pw if x[0] == 's'}
    if p.valu:
        if c.dpp and pv & cr: n = max(n, 2)
        if c.dpp and ('s', 'exec') in ps: n = max(n, 5)
        if c.valu and ps & cr: n = max(n, 4 if c.rdl else 2)
        if c.vmem and ps & cr: n = max(n, 5)
        if c.rdl and pv & cr: n = max(n, 1)
        if p.trans and (c.valu or c.mfma) and pv & cr: n = max(n, 1)
        if c.perml and pv & cr: n = max(n, 2)
        if p.opsel and c.valu and pv & (cr | cw): n = max(n, 1)
        if c.mfma and pv & cr: n = max(n, 2)
        if p.dot:
            if c.dot and c.op == p.op:
                if pv & set(c.srcAB): n = max(n, 3)
            elif pv & (cr | cw): n = max(n, 3)
    if p.stdata and (set(p.stdata) & cw): n = max(n, 2)
    if p.salu and ('s', 'm0') in pw and c.ldsdma: n = max(n, 1)
    if p.mfma:
        if c.mfma:
            if pv & set(c.srcAB): n = max(n, 8)
            if pv & set(c.srcC) and list(p.w) != list(c.srcC): n = max(n, 6)
            if pv & cw and list(p.w) != list(c.srcC): n = max(n, 8)
        elif (c.valu or c.vmem or c.ds) and pv & (cr | cw): n = max(n, 8)
        if c.valu and set(p.srcC) & cw: n = max(n, 3)
    return n

def pad(lines):
    out = []; hist = []
    npad = 0
    for ln in lines:
        c = Ins(ln)
        if c.label or c.dirv:
            out.append(ln); continue
        dist = 0; req = 0
        for p in reversed(hist[-12:]):
            k = need(p, c) - dist
            req = max(req, k)
            dist += p.states
            if dist >= 10: break
        if req > 0:
            nop = Ins(f's_nop {req-1}'); out.append(f'  s_nop {req-1}'); hist.append(nop); npad += req
        out.append('  ' + ln); hist.append(c)
        if c.op in ('s_branch', 's_endpgm'): hist = []
    return out, npad

HEADER = open('cdna_kernels/' + NAME + '.s.ref').read().split('; Override launch')[0]
def wrap(body, grid, block, lds, vgpr, sgpr=102):
    accum = (vgpr + 3) // 4 * 4
    return HEADER + f"""; Override launch geometry by editing the next line (default: block=256,
; grid=ceil(out_elems/256), lds=0). Harness parses it; keep it on one line.
; @launch grid=({grid},1,1) block=({block},1,1) lds={lds}
.amdgcn_target "amdgcn-amd-amdhsa--gfx950"
.text
.globl {NAME}_kernel
.p2align 12
.type {NAME}_kernel,@function
{NAME}_kernel:
{body}
.section .rodata,"a"
.p2align 6
.amdhsa_kernel {NAME}_kernel
  .amdhsa_next_free_vgpr {vgpr}
  .amdhsa_next_free_sgpr {sgpr}
  .amdhsa_accum_offset {accum}
  .amdhsa_group_segment_fixed_size 0
  .amdhsa_kernarg_size 104
  .amdhsa_user_sgpr_count 2
  .amdhsa_user_sgpr_kernarg_segment_ptr 1
  .amdhsa_system_sgpr_workgroup_id_x 1
  .amdhsa_float_denorm_mode_32 3
.end_amdhsa_kernel
"""
```

```python
import sys
from asmlib import *

H1O, H2LO, H2O, H3O, H4O = 0x1000, 0x30000, 0x40000, 0x60000, 0x70000
QP, QF, SC, RED, ST, HB, DUM, CS, WB = 0, 4096, 4352, 5120, 7168, 7424, 8448, 0, 16384
LDS = WB + 32768
TAGC = 0x9E3779B1
LOG2E = 0x3FB8AA3B
SCALE = 0x3DB504F3
EPS = 0x3727C5AC

def gen(stamps=False, pollwave=0, pollwait=0, maxtry=1 << 16):
    L = []
    e = L.append
    D = 'row_mask:0xf bank_mask:0xf'
    nst = [0]
    def stamp(k):
        if stamps:
            e(f's_memrealtime s[{64+2*k}:{65+2*k}]'); e('s_waitcnt lgkmcnt(0)')
    def flush(ks):
        if not stamps: return
        e('s_mov_b64 exec, 1')
        e('s_lshl_b32 s62, s2, 8'); e('s_add_u32 s62, s62, 0x8000000'); e('v_mov_b32 v250, s62')
        for k in ks:
            e(f'v_mov_b32 v252, s{64+2*k}'); e(f'v_mov_b32 v253, s{65+2*k}')
            e(f'global_store_dwordx2 v250, v[252:253], s[32:33] offset:{8*k}')
    def wave_sum(v, sdst, op='add'):
        for r in (8, 4, 2, 1): e(f'v_{op}_f32_dpp v{v}, v{v}, v{v} row_ror:{r} {D}')
        e(f'v_{op}_f32_dpp v{v}, v{v}, v{v} row_bcast:15 row_mask:0xa bank_mask:0xf')
        e(f'v_{op}_f32_dpp v{v}, v{v}, v{v} row_bcast:31 row_mask:0xc bank_mask:0xf')
        e(f'v_readlane_b32 s{sdst}, v{v}, 63')
    def rbf(d, s): e(f'v_cvt_pk_bf16_f32 v{d}, 0, v{s}')

    e('s_cmp_ge_u32 s2, 256')
    e('s_cbranch_scc1 END')
    e('s_load_dwordx16 s[8:23], s[0:1], 0')
    e('s_load_dwordx2 s[32:33], s[0:1], 96')
    e('s_load_dwordx8 s[24:31], s[0:1], 64')
    if stamps: e('s_memrealtime s[64:65]')
    e('v_lshrrev_b32 v8, 6, v0')
    e('v_and_b32 v1, 63, v0')
    e('v_readfirstlane_b32 s35, v8')
    e('s_and_b32 s38, s2, 7')
    e('s_lshr_b32 s39, s2, 3')
    e('s_and_b32 s40, s39, 3')
    e('s_lshl_b32 s36, s38, 2')
    e('s_add_u32 s36, s36, s40')
    e('s_lshr_b32 s37, s39, 2')
    e('v_lshrrev_b32 v2, 4, v1')
    e('v_and_b32 v3, 15, v1')
    e('v_lshlrev_b32 v9, 4, v1')
    e('s_lshl_b32 s40, s37, 3'); e('s_add_u32 s40, s40, s35'); e('s_lshl_b32 s40, s40, 3')
    e('s_lshl_b32 s41, s40, 13'); e('s_lshl_b32 s42, s36, 8'); e('s_add_u32 s41, s41, s42')
    e('v_lshlrev_b32 v10, 14, v2'); e('v_lshl_add_u32 v10, v3, 4, v10'); e('v_add_u32 v10, s41, v10')
    e('v_add_u32 v11, 0x2000, v10')
    e('s_lshl_b32 s40, s40, 1'); e('v_lshl_add_u32 v12, v2, 2, s40')
    e('s_lshl_b32 s41, s36, 20'); e('s_lshl_b32 s42, s37, 15'); e('s_add_u32 s41, s41, s42'); e('s_add_u32 s51, s41, 0xC0000')
    e('s_lshl_b32 s42, s35, 12'); e('s_add_u32 s42, s42, s51')
    e('v_add_u32 v13, s42, v9')
    e('s_waitcnt lgkmcnt(0)')
    e('global_load_dwordx4 v[16:19], v9, s[8:9]')
    e('global_load_dword v20, v12, s[8:9]')
    e('global_load_dwordx4 v[24:27], v10, s[14:15] nt')
    e('global_load_dwordx4 v[28:31], v11, s[14:15] nt')
    e('s_load_dword s34, s[32:33], 0')
    e('s_barrier')
    for t in range(4): e(f'global_load_dwordx4 v[{32+4*t}:{35+4*t}], v13, s[10:11] offset:{1024*t} nt')
    e('s_mov_b32 s48, 0xffff0000'); e('s_mov_b32 s49, 0xffffff00'); e(f's_mov_b32 s50, {maxtry}')
    e('v_and_b32 v14, 1, v1'); e('v_lshlrev_b32 v14, 4, v14'); e('v_mov_b32 v15, 0xffff'); e('v_lshlrev_b32 v14, v14, v15')
    e('v_bfe_u32 v15, v1, 1, 2')
    for d in range(4):
        e(f'v_cmp_eq_u32 vcc, {d}, v15'); e(f'v_cndmask_b32 v{4+d}, 0, v14, vcc')
    e('v_and_b32 v14, 1, v2'); e('v_lshlrev_b32 v14, 4, v14'); e('v_lshl_add_u32 v14, v3, 5, v14')
    e('s_lshl_b32 s40, s35, 9'); e('v_add_u32 v14, s40, v14')
    e('s_waitcnt vmcnt(7)')
    for k in range(4):
        e(f'v_lshlrev_b32 v{48+2*k}, 16, v{16+k}'); e(f'v_and_b32 v{49+2*k}, s48, v{16+k}')
    e('v_add_f32 v56, v48, v49'); e('v_add_f32 v57, v50, v51'); e('v_add_f32 v58, v52, v53'); e('v_add_f32 v59, v54, v55')
    e('v_add_f32 v56, v56, v57'); e('v_add_f32 v58, v58, v59'); e('v_add_f32 v56, v56, v58')
    wave_sum(56, 40)
    e('v_mov_b32 v60, 0x3b000000')
    e('v_mul_f32 v57, s40, v60')
    for k in range(8): e(f'v_sub_f32 v{48+k}, v{48+k}, v57')
    e('v_mul_f32 v56, v48, v48'); e('v_mul_f32 v58, v49, v49')
    for k in range(2, 8, 2):
        e(f'v_fmac_f32 v56, v{48+k}, v{48+k}'); e(f'v_fmac_f32 v58, v{49+k}, v{49+k}')
    e('v_add_f32 v56, v56, v58')
    wave_sum(56, 40)
    rbf(57, 57)
    e('v_mul_f32 v58, s40, v60'); rbf(58, 58)
    e(f'v_add_f32 v58, 0x{EPS:x}, v58'); rbf(58, 58)
    e('v_sqrt_f32 v58, v58'); rbf(58, 58)
    e('v_rcp_f32 v58, v58')
    e('s_waitcnt vmcnt(6) lgkmcnt(0)')
    e('v_lshlrev_b32 v48, 16, v20'); e('v_and_b32 v49, s48, v20')
    e('v_sub_f32 v48, v48, v57'); e('v_sub_f32 v49, v49, v57'); rbf(48, 48); rbf(49, 49)
    e('v_mul_f32 v48, v48, v58'); e('v_mul_f32 v49, v49, v58')
    e('v_cvt_pk_bf16_f32 v48, v48, v48'); e('v_cvt_pk_bf16_f32 v49, v49, v49')
    for d in range(4): e(f'v_and_b32 v{52+d}, v48, v{4+d}')
    for d in range(4): e(f'v_and_b32 v{56+d}, v49, v{4+d}')
    e(f's_add_u32 s34, s34, 0x{TAGC:x}')
    e('s_and_b32 s44, s34, 0xff'); e('s_bfe_u32 s45, s34, 0x80008'); e('s_bfe_u32 s46, s34, 0x80010'); e('s_lshr_b32 s47, s34, 24')
    e('s_waitcnt vmcnt(5)')
    e('v_mfma_f32_16x16x32_bf16 v[48:51], v[52:55], v[24:27], 0')
    e('s_waitcnt vmcnt(4)')
    e('v_mfma_f32_16x16x32_bf16 v[48:51], v[56:59], v[28:31], v[48:51]')
    e('v_lshrrev_b32 v15, 2, v3'); e('v_lshl_add_u32 v15, v2, 5, v15'); e('s_lshl_b32 s40, s35, 2'); e('v_add_u32 v15, s40, v15')
    e('v_lshlrev_b32 v15, 2, v15')
    e('v_lshlrev_b32 v21, 4, v3')
    e('s_mov_b64 exec, 0xffffffff')
    e(f'ds_write_b128 v14, v[48:51] offset:{QP}')
    e('s_mov_b64 exec, -1')
    e('s_waitcnt lgkmcnt(0)')
    stamp(1)
    e('s_barrier')
    e('s_cmp_eq_u32 s35, 7')
    e('s_cbranch_scc1 LEAD1')
    e(f's_cmp_lg_u32 s35, {pollwave}')
    e('s_cbranch_scc1 JOIN2')
    e('s_lshl_b32 s40, s36, 12'); e(f's_add_u32 s40, s40, 0x{H1O:x}')
    e('v_add_u32 v22, s40, v9')
    e('v_and_b32 v23, 31, v1'); e('v_lshlrev_b32 v23, 3, v23'); e('v_lshrrev_b32 v48, 5, v1'); e('v_lshl_add_u32 v23, v48, 2, v23')
    e(f's_waitcnt vmcnt({pollwait})')
    stamp(2)
    e('QPOLL:')
    for t in range(4): e(f'global_load_dwordx4 v[{48+4*t}:{51+4*t}], v22, s[32:33] offset:{1024*t} sc1')
    e('s_waitcnt vmcnt(0)')
    for t in range(4):
        for k in range(4): e(f'v_xor_b32 v{48+4*t+k}, s{44+k}, v{48+4*t+k}')
    e('v_or3_b32 v64, v48, v49, v50')
    for k in range(51, 63, 2): e(f'v_or3_b32 v64, v64, v{k}, v{k+1}')
    e('v_or_b32 v64, v64, v63')
    e('v_and_b32 v64, 0xff, v64')
    e('v_cmp_ne_u32 vcc, 0, v64')
    e('s_cbranch_vccz QOK')
    e('s_sub_u32 s50, s50, 1')
    e('s_cbranch_scc0 QPOLL')
    e('QOK:')
    for k in range(4):
        e(f'v_add_f32 v{48+k}, v{48+k}, v{52+k}'); e(f'v_add_f32 v{56+k}, v{56+k}, v{60+k}')
    for k in range(4): e(f'v_add_f32 v{48+k}, v{48+k}, v{56+k}')
    e('v_permlane32_swap_b32 v48, v50'); e('v_permlane32_swap_b32 v49, v51')
    e('v_add_f32 v48, v48, v50'); e('v_add_f32 v49, v49, v51')
    e('v_cvt_pk_bf16_f32 v48, v48, v49')
    e(f'ds_write_b32 v23, v48 offset:{QF}')
    e('s_waitcnt lgkmcnt(0)')
    stamp(3)
    e('s_branch JOIN2')
    e('LEAD1:')
    e('v_lshrrev_b32 v22, 1, v1'); e('v_lshlrev_b32 v22, 4, v22')
    e('v_and_b32 v23, 1, v1'); e('v_lshl_add_u32 v23, v23, 11, v22')
    for k in range(4): e(f'ds_read_b128 v[{48+4*k}:{51+4*k}], v23 offset:{QP+512*k}')
    e('s_lshl_b32 s40, s36, 3'); e('s_add_u32 s40, s40, s37'); e('s_lshl_b32 s52, s40, 9')
    e(f's_add_u32 s40, s52, 0x{H1O:x}')
    e('v_add_u32 v22, s40, v22')
    e('v_add_u32 v64, s51, v9')
    e('v_add_u32 v64, 0x1000, v64')
    e('s_waitcnt lgkmcnt(0)')
    for k in range(4):
        e(f'v_add_f32 v{48+k}, v{48+k}, v{52+k}'); e(f'v_add_f32 v{56+k}, v{56+k}, v{60+k}')
    for k in range(4): e(f'v_add_f32 v{48+k}, v{48+k}, v{56+k}')
    for k in range(4): e(f'v_add_f32_dpp v{48+k}, v{48+k}, v{48+k} quad_perm:[1,0,3,2] {D}')
    for k in range(4): e(f'v_add_u32 v{48+k}, 0x80, v{48+k}')
    for k in range(4): e(f'v_and_b32 v{48+k}, s49, v{48+k}')
    for k in range(4): e(f'v_or_b32 v{48+k}, s{44+k}, v{48+k}')
    e('s_mov_b32 s40, 0x55555555'); e('s_mov_b32 s41, s40'); e('s_mov_b64 exec, s[40:41]')
    e('global_store_dwordx4 v22, v[48:51], s[32:33] sc1')
    e('s_mov_b64 exec, -1')
    stamp(4)
    VB = 96
    for t in range(32):
        e(f'global_load_dwordx4 v[{VB+4*t}:{VB+3+4*t}], v64, s[12:13] offset:{(t%8)*1024-4096} nt')
        if t % 8 == 7 and t < 31: e('v_add_u32 v64, 0x2000, v64')
    stamp(5)
    e('JOIN2:')
    e('s_barrier')
    e(f'ds_read_b128 v[48:51], v21 offset:{QF}')
    e('s_cmp_eq_u32 s35, 7')
    e('s_cbranch_scc1 KLEAD')
    e('s_waitcnt vmcnt(0)')
    e('KLEAD:')
    e('s_waitcnt vmcnt(33) lgkmcnt(0)')
    for k in range(4):
        for t in range(4):
            c = '0' if k == 0 else f'v{52+t}'
            e(f'v_dot2_f32_bf16 v{52+t}, v{32+4*t+k}, v{48+k}, {c}')
    e('v_add_f32_dpp v52, v52, v52 row_ror:8 row_mask:0xf bank_mask:0x3')
    e('v_add_f32_dpp v53, v53, v53 row_ror:8 row_mask:0xf bank_mask:0x3')
    e('v_add_f32_dpp v52, v54, v54 row_ror:8 row_mask:0xf bank_mask:0xc')
    e('v_add_f32_dpp v53, v55, v55 row_ror:8 row_mask:0xf bank_mask:0xc')
    e('v_add_f32_dpp v52, v52, v52 row_shl:4 row_mask:0xf bank_mask:0x5')
    e('v_add_f32_dpp v52, v53, v53 row_shr:4 row_mask:0xf bank_mask:0xa')
    e(f'v_add_f32_dpp v52, v52, v52 quad_perm:[1,0,3,2] {D}')
    e(f'v_add_f32_dpp v52, v52, v52 quad_perm:[2,3,0,1] {D}')
    rbf(52, 52); e(f'v_mul_f32 v52, 0x{SCALE:x}, v52'); rbf(52, 52)
    e(f'ds_write_b32 v15, v52 offset:{SC}')
    e('s_waitcnt lgkmcnt(0)')
    e('s_barrier')
    e('s_cmp_eq_u32 s35, 7')
    e('s_cbranch_scc0 NOTLEAD3')
    stamp(6)
    e('v_lshlrev_b32 v22, 3, v1')
    e(f'ds_read_b64 v[48:49], v22 offset:{SC}')
    e('v_lshlrev_b32 v23, 7, v2')
    e(f'v_mov_b32 v51, 0x{LOG2E:x}')
    e('s_waitcnt lgkmcnt(0)')
    e('v_max_f32 v50, v48, v49')
    wave_sum(50, 40, 'max')
    e('v_subrev_f32 v48, s40, v48'); e('v_subrev_f32 v49, s40, v49')
    e('v_mul_f32 v48, v48, v51'); e('v_mul_f32 v49, v49, v51')
    e('v_exp_f32 v48, v48'); e('v_exp_f32 v49, v49')
    e('v_cvt_pk_bf16_f32 v52, v48, v48'); e('v_cvt_pk_bf16_f32 v53, v49, v49')
    e(f'ds_write_b64 v22, v[52:53] offset:{SC}')
    e('v_add_f32 v50, v48, v49')
    PB = 64
    for k in range(8): e(f'ds_read_b128 v[{PB+4*k}:{PB+3+4*k}], v23 offset:{SC+16*k}')
    wave_sum(50, 41, 'add')
    e('s_lshr_b32 s42, s52, 5'); e(f's_add_u32 s42, s42, 0x{H2LO:x}')
    e('v_mov_b32 v48, s40'); e('v_mov_b32 v50, s34'); e('v_mov_b32 v51, s34'); e('v_mov_b32 v52, s42'); e('v_mov_b32 v49, s41')
    e('s_mov_b64 exec, 1')
    e('global_store_dwordx4 v52, v[48:51], s[32:33] sc1')
    e('s_mov_b64 exec, -1')
    e('v_lshrrev_b32 v22, 2, v3'); e('v_lshlrev_b32 v22, 7, v22'); e('v_lshl_add_u32 v22, v2, 6, v22')
    e('v_and_b32 v23, 3, v3'); e('v_lshl_add_u32 v22, v23, 4, v22')
    e(f's_add_u32 s42, s52, 0x{H2O:x}'); e('v_add_u32 v22, s42, v22')
    e('v_mov_b32 v24, s34'); e('v_mov_b32 v25, s34'); e('v_mov_b32 v28, s34'); e('v_mov_b32 v29, s34')
    e('s_waitcnt lgkmcnt(0)')
    stamp(7)
    for t in range(32):
        a = 32 + 4 * (t & 1)
        for d in range(4): e(f'v_and_b32 v{a+d}, v{PB+t}, v{4+d}')
        e(f's_waitcnt vmcnt({31-t+1})')
        c = '0' if t == 0 else 'v[40:43]'
        e(f'v_mfma_f32_16x16x32_bf16 v[40:43], v[{a}:{a+3}], v[{VB+4*t}:{VB+3+4*t}], {c}')
    e('s_mov_b32 s40, 0xffff0000'); e('s_mov_b32 s41, 0')
    e('v_cvt_pk_bf16_f32 v26, v40, v41'); e('v_cvt_pk_bf16_f32 v27, v42, v43')
    e('s_mov_b64 exec, 0xffff')
    e('global_store_dwordx4 v22, v[24:27], s[32:33] sc1')
    e('s_mov_b64 exec, s[40:41]')
    e('global_store_dwordx4 v22, v[26:29], s[32:33] sc1')
    e('s_mov_b64 exec, -1')
    stamp(8)
    e('NOTLEAD3:')
    e('s_cmp_lt_u32 s39, 16')
    e('s_cbranch_scc1 OPROJ')
    e('s_sub_u32 s53, s2, 128')
    e('s_cmp_lt_u32 s53, 43')
    e('s_cbranch_scc1 FFN')
    e('FIN:')
    if stamps:
        e('s_cmp_eq_u32 s35, 7'); e('s_cbranch_scc0 FIN_A'); flush([4, 5, 6, 7, 8]); e('s_endpgm')
        e('FIN_A:')
        e(f's_cmp_eq_u32 s35, {pollwave}'); e('s_cbranch_scc0 FIN_B'); flush([2, 3]);
        e('FIN_B:')
        e('s_cmp_eq_u32 s35, 0'); e('s_cbranch_scc0 END'); flush([0, 1]);
    e('END:')
    e('s_endpgm')

    e('OPROJ:')
    e('s_cmp_eq_u32 s35, 7')
    e('s_cbranch_scc1 OP_LEAD')
    e('s_cmp_ge_u32 s35, 4')
    e('s_cbranch_scc1 FIN')
    e('s_lshr_b32 s40, s35, 1'); e('s_and_b32 s41, s35, 1')
    e('s_lshl_b32 s42, s38, 19'); e('s_lshl_b32 s43, s40, 18'); e('s_add_u32 s42, s42, s43')
    e('s_lshl_b32 s43, s41, 16'); e('s_add_u32 s42, s42, s43'); e('s_lshl_b32 s43, s39, 6'); e('s_add_u32 s42, s42, s43')
    e('v_lshrrev_b32 v22, 2, v1'); e('v_lshlrev_b32 v22, 10, v22'); e('v_and_b32 v23, 3, v1'); e('v_lshl_add_u32 v22, v23, 4, v22')
    e('v_add_u32 v22, s42, v22')
    e('s_lshl_b32 s43, s35, 13'); e(f's_add_u32 s43, s43, {WB}')
    e('s_mov_b32 m0, s43')
    for q in range(8):
        e('global_load_lds_dwordx4 v22, s[16:17] nt')
        if q < 7:
            e('s_add_u32 m0, m0, 1024')
            e(f'v_add_u32 v22, 0x{(0x4000 if q != 3 else 0x20000 - 3*0x4000):x}, v22')
    e('v_lshrrev_b32 v23, 2, v3'); e('v_lshlrev_b32 v23, 6, v23'); e('v_lshl_add_u32 v23, v2, 9, v23')
    e('v_and_b32 v24, 3, v3'); e('v_lshl_add_u32 v23, v24, 3, v23'); e('v_add_u32 v23, s43, v23')
    e('v_and_b32 v24, 1, v2'); e('v_lshlrev_b32 v24, 2, v24'); e('v_and_b32 v25, 7, v3'); e('v_xor_b32 v24, v24, v25')
    e('v_lshrrev_b32 v25, 1, v2'); e('v_lshl_add_u32 v24, v25, 3, v24'); e('v_lshlrev_b32 v24, 4, v24')
    e('s_lshl_b32 s42, s38, 1'); e('s_add_u32 s42, s42, s40')
    e('s_lshl_b32 s43, s42, 8'); e(f's_add_u32 s43, s43, 0x{H2LO:x}'); e('v_add_u32 v24, s43, v24')
    e('s_lshl_b32 s43, s42, 13'); e('s_lshl_b32 s42, s41, 8'); e('s_add_u32 s43, s43, s42'); e(f's_add_u32 s43, s43, 0x{H2O:x}')
    e('v_lshlrev_b32 v25, 9, v3'); e('v_lshl_add_u32 v25, v2, 4, v25'); e('v_add_u32 v25, s43, v25')
    e('v_lshrrev_b32 v26, 1, v2'); e('v_lshl_add_u32 v26, v26, 4, v3'); e('v_lshlrev_b32 v26, 5, v26')
    e('v_and_b32 v27, 1, v2'); e('v_lshl_add_u32 v26, v27, 2, v26'); e('s_lshl_b32 s42, s35, 3'); e('v_add_u32 v26, s42, v26')
    e('v_lshrrev_b32 v27, 1, v1'); e('v_and_b32 v28, 3, v27'); e('v_lshlrev_b32 v28, 3, v28'); e('v_lshrrev_b32 v28, v28, s34'); e('v_and_b32 v28, 0xff, v28')
    e('s_lshl_b32 s42, s38, 11'); e('s_lshl_b32 s43, s39, 7'); e('s_add_u32 s42, s42, s43'); e(f's_add_u32 s42, s42, 0x{H3O:x}')
    e('v_lshlrev_b32 v27, 2, v27'); e('v_add_u32 v27, s42, v27')
    for r in range(8): e(f'v_mov_b32 v{40+r}, 0')
    e('s_waitcnt vmcnt(0)')
    BB = 96
    for hb in range(2):
        for tt in range(2):
            for cg in range(2):
                b = BB + ((hb * 2 + tt) * 2 + cg) * 4
                for a in range(2):
                    e(f'ds_read_b64_tr_b16 v[{b+2*a}:{b+2*a+1}], v23 offset:{hb*4096+tt*2048+a*256+cg*32}')
    stamp(9)
    e('s_barrier')
    e('LPOLL:')
    e('global_load_dwordx4 v[48:51], v24, s[32:33] sc1')
    e('s_waitcnt vmcnt(0)')
    e('v_cmp_ne_u32 vcc, s34, v51')
    e('s_cbranch_vccz LOK')
    e('s_sub_u32 s50, s50, 1')
    e('s_cbranch_scc0 LPOLL')
    e('LOK:')
    def opoll():
        for tt in range(2):
            for ty in range(2):
                b = 64 + tt * 8 + ty * 4
                e(f'global_load_dwordx4 v[{b}:{b+3}], v25, s[32:33] offset:{tt*128+ty*64} sc1')
    opoll()
    e(f'v_max_f32_dpp v52, v48, v48 quad_perm:[1,0,3,2] {D}')
    e(f'v_max_f32_dpp v52, v52, v52 quad_perm:[2,3,0,1] {D}')
    e(f'v_max_f32_dpp v52, v52, v52 row_half_mirror {D}')
    e('v_sub_f32 v52, v48, v52'); e(f'v_mul_f32 v52, 0x{LOG2E:x}, v52'); e('v_exp_f32 v52, v52')
    e('v_mul_f32 v53, v52, v49')
    e(f'v_add_f32_dpp v53, v53, v53 quad_perm:[1,0,3,2] {D}')
    e(f'v_add_f32_dpp v53, v53, v53 quad_perm:[2,3,0,1] {D}')
    e(f'v_add_f32_dpp v53, v53, v53 row_half_mirror {D}')
    e('v_rcp_f32 v53, v53'); e('v_mul_f32 v52, v52, v53')
    for r in range(4):
        e(f'v_mov_b32_dpp v{40+r}, v52 row_newbcast:{r} row_mask:0x3 bank_mask:0xf')
        e(f'v_mov_b32_dpp v{44+r}, v52 row_newbcast:{r} row_mask:0xc bank_mask:0xf')
    stamp(10)
    e('s_branch OWAIT')
    e('OPOLL:')
    opoll()
    e('OWAIT:')
    e('s_waitcnt vmcnt(0) lgkmcnt(0)')
    e('v_cmp_ne_u32 s[40:41], s34, v64'); e('v_cmp_ne_u32 s[42:43], s34, v71')
    e('v_cmp_ne_u32 s[54:55], s34, v72'); e('v_cmp_ne_u32 vcc, s34, v79')
    e('s_or_b64 s[40:41], s[40:41], s[42:43]'); e('s_or_b64 vcc, vcc, s[54:55]'); e('s_or_b64 vcc, vcc, s[40:41]')
    e('s_cbranch_scc0 OOK')
    e('s_sub_u32 s50, s50, 1')
    e('s_cbranch_scc0 OPOLL')
    e('OOK:')
    stamp(11)
    for tt in range(2):
        for hb in range(2):
            for cg in range(2):
                b = BB + ((hb * 2 + tt) * 2 + cg) * 4
                d = 80 + (hb * 2 + cg) * 4
                c = '0' if tt == 0 else f'v[{d}:{d+3}]'
                e(f'v_mfma_f32_16x16x32_bf16 v[{d}:{d+3}], v[{66+8*tt}:{69+8*tt}], v[{b}:{b+3}], {c}')
    e('v_mul_f32 v48, v40, v80'); e('v_mul_f32 v49, v40, v84')
    for r in range(1, 4):
        e(f'v_fmac_f32 v48, v{40+r}, v{80+r}'); e(f'v_fmac_f32 v49, v{40+r}, v{84+r}')
    for r in range(4):
        e(f'v_fmac_f32 v48, v{44+r}, v{88+r}'); e(f'v_fmac_f32 v49, v{44+r}, v{92+r}')
    e('v_permlane32_swap_b32 v48, v49')
    e('v_add_f32 v48, v48, v49')
    e(f'ds_write_b32 v26, v48 offset:{RED}')
    e('s_waitcnt lgkmcnt(0)')
    e('s_barrier')
    e('s_cmp_lg_u32 s35, 0')
    e('s_cbranch_scc1 FIN')
    e(f'ds_read_b128 v[48:51], v9 offset:{RED}')
    e('s_mov_b32 s40, 0x55555555'); e('s_mov_b32 s41, s40')
    e('s_waitcnt lgkmcnt(0)')
    e('v_add_f32 v48, v48, v49'); e('v_add_f32 v50, v50, v51'); e('v_add_f32 v48, v48, v50')
    e(f'v_add_f32_dpp v48, v48, v48 quad_perm:[1,0,3,2] {D}')
    e('v_add_u32 v48, 0x80, v48')
    e('v_and_or_b32 v48, v48, s49, v28')
    e('s_mov_b64 exec, s[40:41]')
    e('global_store_dword v27, v48, s[32:33] sc1')
    stamp(12)
    flush([9, 10, 11, 12])
    e('s_mov_b64 exec, -1')
    e('s_branch FIN')
    e('OP_LEAD:')
    e('s_barrier')
    e('s_branch FIN')

    e('FFN:')
    e('s_mul_i32 s40, s35, 64*2752'); e('s_lshl_b32 s41, s53, 6'); e('s_add_u32 s40, s40, s41')
    e('s_movk_i32 s42, 2752')
    e('v_lshrrev_b32 v22, 2, v1'); e('v_and_b32 v23, 3, v1'); e('v_lshlrev_b32 v23, 4, v23'); e('v_mad_u32_u24 v22, v22, s42, v23')
    e('v_add_u32 v22, s40, v22')
    e('s_lshl_b32 s43, s35, 12'); e(f's_add_u32 s43, s43, {WB}')
    e('s_mov_b32 m0, s43')
    for q in range(4):
        e('global_load_lds_dwordx4 v22, s[20:21] nt')
        if q < 3:
            e('s_add_u32 m0, m0, 1024'); e(f'v_add_u32 v22, {16*2752}, v22')
    e('v_lshrrev_b32 v24, 3, v1')
    e('v_and_b32 v25, 7, v1')
    e('v_lshlrev_b32 v26, 12, v24'); e('v_lshl_add_u32 v26, v25, 4, v26')
    e('s_lshl_b32 s40, s53, 15'); e('s_lshl_b32 s41, s35, 7'); e('s_add_u32 s40, s40, s41'); e('v_add_u32 v26, s40, v26')
    e('v_sub_u32 v27, 7, v25'); e('v_min_u32 v27, v27, v25'); e('v_lshl_add_u32 v27, v24, 2, v27')
    e('s_lshl_b32 s41, s53, 6'); e('v_lshl_add_u32 v28, v27, 1, s41')
    e('v_lshrrev_b32 v29, 2, v25'); e('v_lshlrev_b32 v29, 4, v29'); e('v_lshl_add_u32 v27, v27, 5, v29')
    e('v_lshrrev_b32 v29, 3, v3'); e('v_lshlrev_b32 v29, 6, v29'); e('v_lshl_add_u32 v29, v2, 4, v29')
    e('v_and_b32 v30, 1, v3'); e('v_lshl_add_u32 v29, v30, 3, v29'); e('v_and_b32 v31, 4, v3'); e('v_add_u32 v29, v29, v31')
    e('s_lshl_b32 s41, s35, 7'); e('v_add_u32 v29, s41, v29')
    e('v_lshrrev_b32 v31, 1, v3'); e('v_lshlrev_b32 v31, 11, v31'); e('v_lshl_add_u32 v31, v2, 5, v31'); e('v_lshl_add_u32 v31, v30, 4, v31')
    e('s_lshl_b32 s41, s35, 8'); e(f's_add_u32 s41, s41, 0x{H3O:x}'); e('v_add_u32 v31, s41, v31')
    e('s_barrier')
    for t in range(4): e(f'global_load_dwordx4 v[{112+4*t}:{115+4*t}], v26, s[24:25] offset:{1024*t} nt')
    e('global_load_ushort v32, v28, s[22:23]')
    e('global_load_dword v33, v29, s[8:9]')
    e('v_and_b32 v34, 3, v1'); e('v_lshl_add_u32 v34, v34, 2, v2'); e('s_and_b32 s41, s53, 31'); e('s_lshl_b32 s41, s41, 5'); e('v_lshl_add_u32 v34, v34, 1, s41')
    e('global_load_ushort v35, v34, s[26:27]')
    e('v_lshrrev_b32 v23, 2, v3'); e('v_lshlrev_b32 v23, 6, v23'); e('v_lshl_add_u32 v23, v2, 9, v23')
    e('v_and_b32 v36, 3, v3'); e('v_lshl_add_u32 v23, v36, 3, v23'); e('v_add_u32 v23, s43, v23')
    e('s_lshl_b32 s41, s35, 2'); e('v_lshl_add_u32 v36, v3, 5, s41')
    e(f'v_mov_b32 v37, {DUM-RED}'); e('v_cmp_gt_u32 vcc, 16, v1'); e('v_cndmask_b32 v36, v37, v36, vcc')
    e('v_lshrrev_b32 v37, 3, v3'); e('v_lshl_add_u32 v37, v37, 5, s41')
    e('v_and_b32 v38, 3, v1'); e('v_lshlrev_b32 v38, 4, v38')
    e('v_and_b32 v39, 1, v2'); e('v_lshlrev_b32 v39, 4, v39'); e('v_lshl_add_u32 v39, v25, 5, v39')
    e('v_lshrrev_b32 v40, 1, v2'); e('v_lshl_add_u32 v39, v40, 3, v39')
    e('s_lshl_b32 s40, s53, 11'); e('s_lshl_b32 s41, s35, 8'); e('s_add_u32 s40, s40, s41'); e(f's_add_u32 s40, s40, 0x{H4O:x}'); e('v_add_u32 v39, s40, v39')
    e('v_lshlrev_b32 v40, 4, v40'); e('v_lshrrev_b32 v40, v40, s34'); e('v_bfe_u32 v41, v40, 8, 8'); e('v_and_b32 v40, 0xff, v40')
    e('v_lshrrev_b32 v42, 2, v1'); e('v_lshlrev_b32 v42, 11, v42'); e('v_add_u32 v42, v42, v38')
    e('s_lshl_b32 s40, s53, 6'); e(f's_add_u32 s40, s40, 0x{H4O:x}'); e('v_add_u32 v42, s40, v42')
    e('v_add_u32 v43, 0x8000, v42'); e('v_add_u32 v44, 0x10000, v42')
    for d in range(4): e(f'v_mov_b32 v{48+d}, 0x3f803f80')
    e('s_waitcnt vmcnt(7)')
    for u in range(2):
        for cg in range(2):
            b = BB + (u * 2 + cg) * 4
            for a in range(2):
                e(f'ds_read_b64_tr_b16 v[{b+2*a}:{b+2*a+1}], v23 offset:{a*2048+u*256+cg*32}')
    e('s_waitcnt lgkmcnt(0)')
    e(f'v_mfma_f32_16x16x32_bf16 v[80:83], v[48:51], v[{BB}:{BB+3}], 0')
    e(f'v_mfma_f32_16x16x32_bf16 v[84:87], v[48:51], v[{BB+4}:{BB+7}], 0')
    e(f'v_mfma_f32_16x16x32_bf16 v[80:83], v[48:51], v[{BB+8}:{BB+11}], v[80:83]')
    e(f'v_mfma_f32_16x16x32_bf16 v[84:87], v[48:51], v[{BB+12}:{BB+15}], v[84:87]')
    e(f'ds_write_b32 v36, v80 offset:{RED}'); e(f'ds_write_b32 v36, v84 offset:{RED+512}')
    e('s_waitcnt lgkmcnt(0)')
    e('s_barrier')
    e(f'ds_read_b128 v[52:55], v27 offset:{RED}')
    e('s_waitcnt lgkmcnt(0)')
    e('v_add_f32 v52, v52, v53'); e('v_add_f32 v54, v54, v55'); e('v_add_f32 v45, v52, v54')
    e(f'v_add_f32_dpp v45, v45, v45 row_half_mirror {D}')
    e('s_barrier')
    e('s_waitcnt vmcnt(0)')
    e('v_lshlrev_b32 v32, 16, v32'); e('v_lshlrev_b32 v35, 16, v35')
    e('v_lshlrev_b32 v46, 16, v33'); e('v_and_b32 v47, s48, v33')
    e('v_mov_b32 v60, 0x3b000000')
    stamp(9)
    e('HPOLL:')
    e('global_load_dwordx4 v[64:67], v31, s[32:33] sc1')
    e('global_load_dwordx4 v[68:71], v31, s[32:33] offset:128 sc1')
    e('s_waitcnt vmcnt(0)')
    for k in range(8): e(f'v_xor_b32 v{64+k}, s{44+(k&3)}, v{64+k}')
    e('v_or3_b32 v72, v64, v65, v66'); e('v_or3_b32 v73, v67, v68, v69'); e('v_or3_b32 v72, v72, v70, v71')
    e('v_or_b32 v72, v72, v73'); e('v_and_b32 v72, 0xff, v72')
    e('v_cmp_ne_u32 vcc, 0, v72')
    e('s_cbranch_vccz HOK')
    e('s_sub_u32 s50, s50, 1')
    e('s_cbranch_scc0 HPOLL')
    e('HOK:')
    stamp(10)
    for k in range(4): e(f'v_add_f32_dpp v{64+k}, v{64+k}, v{64+k} row_ror:8 row_mask:0xf bank_mask:0x3')
    for k in range(4): e(f'v_add_f32_dpp v{64+k}, v{68+k}, v{68+k} row_ror:8 row_mask:0xf bank_mask:0xc')
    for k in range(2): e(f'v_add_f32_dpp v{64+k}, v{64+k}, v{64+k} row_shl:4 row_mask:0xf bank_mask:0x5')
    for k in range(2): e(f'v_add_f32_dpp v{64+k}, v{66+k}, v{66+k} row_shr:4 row_mask:0xf bank_mask:0xa')
    for k in range(2): e(f'v_add_f32_dpp v{64+k}, v{64+k}, v{64+k} quad_perm:[2,3,0,1] {D}')
    rbf(64, 64); rbf(65, 65)
    e('v_add_f32 v64, v64, v46'); e('v_add_f32 v65, v65, v47')
    e('v_cvt_pk_bf16_f32 v72, v64, v65')
    for d in range(1, 4): e(f'v_mov_b32_dpp v{72+d}, v72 row_ror:{16-4*d} {D}')
    e(f'ds_write_b32 v29, v72 offset:{HB}')
    for u in range(2):
        for cg in range(2):
            b = BB + (u * 2 + cg) * 4; d = 80 + (u * 2 + cg) * 4
            e(f'v_mfma_f32_16x16x32_bf16 v[{d}:{d+3}], v[72:75], v[{b}:{b+3}], 0')
    e('v_dot2_f32_bf16 v64, v72, v48, 0'); e('v_dot2_f32_bf16 v65, v72, v72, 0')
    e('v_add_f32_dpp v64, v64, v64 row_ror:8 row_mask:0xf bank_mask:0x3')
    e('v_add_f32_dpp v64, v65, v65 row_ror:8 row_mask:0xf bank_mask:0xc')
    e(f'v_add_f32_dpp v64, v64, v64 row_half_mirror {D}')
    e(f'v_add_f32_dpp v64, v64, v64 quad_perm:[1,0,3,2] {D}')
    e('v_mov_b32 v65, v64'); e('v_permlane32_swap_b32 v64, v65'); e('v_add_f32 v64, v64, v65')
    e('v_mov_b32 v65, v64'); e('v_permlane16_swap_b32 v64, v65'); e('v_add_f32 v64, v64, v65')
    e(f'ds_write_b32 v37, v64 offset:{ST}')
    e('v_add_f32 v80, v80, v89'); e('v_add_f32 v84, v84, v93')
    e(f'ds_write_b32 v36, v80 offset:{RED}'); e(f'ds_write_b32 v36, v84 offset:{RED+512}')
    e('s_waitcnt lgkmcnt(0)')
    e('s_barrier')
    e(f'ds_read_b128 v[56:59], v38 offset:{ST}')
    e(f'ds_read_b128 v[52:55], v27 offset:{RED}')
    e(f'ds_read_u16 v61, v34 offset:{HB}')
    e('s_waitcnt lgkmcnt(2)')
    e('v_add_f32 v56, v56, v57'); e('v_add_f32 v58, v58, v59'); e('v_add_f32 v56, v56, v58')
    e(f'v_add_f32_dpp v56, v56, v56 quad_perm:[1,0,3,2] {D}')
    e('s_waitcnt lgkmcnt(1)')
    e('v_add_f32 v52, v52, v53'); e('v_add_f32 v54, v54, v55')
    e(f'v_mul_f32_dpp v57, v56, v60 quad_perm:[0,0,0,0] {D}')
    e(f'v_mul_f32_dpp v58, v56, v60 quad_perm:[2,2,2,2] {D}')
    e('v_add_f32 v52, v52, v54')
    e('v_fma_f32 v58, -v57, v57, v58')
    e('v_max_f32 v58, 0, v58')
    rbf(58, 58)
    e(f'v_add_f32_dpp v52, v52, v52 row_half_mirror {D}')
    e(f'v_add_f32 v58, 0x{EPS:x}, v58'); rbf(58, 58)
    e('v_sqrt_f32 v58, v58')
    rbf(57, 57)
    rbf(58, 58)
    e('v_rcp_f32 v58, v58')
    e('v_fma_f32 v52, -v57, v45, v52')
    e('v_mul_f32 v52, v52, v58'); rbf(52, 52)
    e('v_add_f32 v52, v52, v32'); rbf(52, 52)
    e('v_max_f32 v52, 0, v52'); e('v_mul_f32 v52, v52, v52')
    e('v_cvt_pk_bf16_f32 v52, v52, v52')
    for t in range(4):
        a = 64 + 4 * t
        for d in range(4):
            s = t if d < 2 else 3 - t
            e(f'v_and_b32_dpp v{a+d}, v52, v{4+d} quad_perm:[{s},{s},{s},{s}] {D}')
    for t in range(4):
        a = 64 + 4 * t
        c = '0' if t == 0 else 'v[80:83]'
        e(f'v_mfma_f32_16x16x32_bf16 v[80:83], v[{a}:{a+3}], v[{112+4*t}:{115+4*t}], {c}')
    e('s_mov_b32 s40, 0x00ff00ff'); e('s_mov_b32 s41, s40')
    e('v_permlane32_swap_b32 v80, v82'); e('v_permlane32_swap_b32 v81, v83')
    e(f'v_add_f32_dpp v80, v82, v80 row_ror:8 {D}'); e(f'v_add_f32_dpp v81, v83, v81 row_ror:8 {D}')
    e('v_add_u32 v80, 0x80, v80'); e('v_add_u32 v81, 0x80, v81')
    e('v_and_or_b32 v80, v80, s49, v40'); e('v_and_or_b32 v81, v81, s49, v41')
    e('s_mov_b64 exec, s[40:41]')
    e('global_store_dwordx2 v39, v[80:81], s[32:33] sc1')
    e('s_mov_b64 exec, -1')
    stamp(11)
    e('s_cmp_lg_u32 s35, 0')
    e('s_cbranch_scc1 FIN')
    e('s_cmp_ge_u32 s53, 32')
    e('s_cbranch_scc1 FFIN')
    e('s_waitcnt lgkmcnt(0)')
    e('v_lshlrev_b32 v61, 16, v61')
    e('s_mov_b32 s42, -1'); e('s_mov_b32 s43, 0xfff')
    e('FPOLL:')
    e('global_load_dwordx4 v[64:67], v42, s[32:33] sc1')
    e('global_load_dwordx4 v[68:71], v43, s[32:33] sc1')
    for k in range(4): e(f'v_mov_b32 v{72+k}, s{44+k}')
    e('s_mov_b64 exec, s[42:43]')
    e('global_load_dwordx4 v[72:75], v44, s[32:33] sc1')
    e('s_mov_b64 exec, -1')
    e('s_waitcnt vmcnt(0)')
    for k in range(12): e(f'v_xor_b32 v{64+k}, s{44+(k&3)}, v{64+k}')
    e('v_or3_b32 v76, v64, v65, v66'); e('v_or3_b32 v77, v67, v68, v69'); e('v_or3_b32 v76, v76, v70, v71'); e('v_or3_b32 v77, v77, v72, v73')
    e('v_or3_b32 v76, v76, v74, v75'); e('v_or_b32 v76, v76, v77'); e('v_and_b32 v76, 0xff, v76')
    e('v_cmp_ne_u32 vcc, 0, v76')
    e('s_cbranch_vccz FOK')
    e('s_sub_u32 s50, s50, 1')
    e('s_cbranch_scc0 FPOLL')
    e('FOK:')
    stamp(12)
    for k in range(4): e(f'v_add_f32 v{64+k}, v{64+k}, v{68+k}')
    for k in range(4): e(f'v_add_f32 v{64+k}, v{64+k}, v{72+k}')
    e('v_permlane32_swap_b32 v64, v66'); e('v_permlane32_swap_b32 v65, v67')
    e('v_add_f32 v64, v64, v66'); e('v_add_f32 v65, v65, v67')
    e('v_permlane16_swap_b32 v64, v65')
    e('v_add_f32 v64, v64, v65')
    e(f'v_add_f32_dpp v64, v64, v64 row_ror:8 {D}'); e(f'v_add_f32_dpp v64, v64, v64 row_ror:4 {D}')
    rbf(64, 64); e('v_add_f32 v64, v64, v35'); rbf(64, 64); e('v_add_f32 v64, v64, v61')
    e('v_cvt_pk_bf16_f32 v64, v64, v64')
    e('s_mov_b32 s40, 0x000f000f'); e('s_mov_b32 s41, s40'); e('s_mov_b64 exec, s[40:41]')
    e('global_store_short v34, v64, s[28:29]')
    e('s_cmp_lg_u32 s53, 0')
    e('s_cbranch_scc1 FFIN')
    e('s_mov_b64 exec, 1')
    e('v_mov_b32 v65, 0'); e('v_mov_b32 v66, s34')
    e('global_store_dword v65, v66, s[32:33]')
    e('FFIN:')
    stamp(13)
    flush([9, 10, 11, 12, 13])
    e('s_branch FIN')
    out, npad = pad(L)
    return wrap('\n'.join(out), 256, 512, LDS, 256 if stamps else 224), npad

if __name__ == '__main__':
    s, n = gen(); open('v1.s', 'w').write(s); print('pad', n)
    s, n = gen(stamps=True); open('v1s.s', 'w').write(s)
```

```python
import sys
from asmlib import *

H1O, H2LO, H2O, H3O, H4O = 0x1000, 0x30000, 0x40000, 0x60000, 0x70000
QP, QF, SC, RED, ST, HB, DUM, CS, WB = 0, 4096, 4352, 5120, 7168, 7424, 8448, 0, 16384
LDS = WB + 32768
TAGC = 0x9E3779B1
LOG2E = 0x3FB8AA3B
SCALE = 0x3DB504F3
EPS = 0x3727C5AC

def gen(stamps=False, pollwave=0, pollwait=0, maxtry=1 << 16, hold=0):
    L = []
    e = L.append
    D = 'row_mask:0xf bank_mask:0xf'
    nst = [0]
    def stamp(k):
        if stamps:
            e(f's_memrealtime s[{64+2*k}:{65+2*k}]'); e('s_waitcnt lgkmcnt(0)')
    def flush(ks):
        if not stamps: return
        e('s_mov_b64 exec, 1')
        e('s_lshl_b32 s62, s2, 8'); e('s_add_u32 s62, s62, 0x8000000'); e('v_mov_b32 v250, s62')
        for k in ks:
            e(f'v_mov_b32 v252, s{64+2*k}'); e(f'v_mov_b32 v253, s{65+2*k}')
            e(f'global_store_dwordx2 v250, v[252:253], s[32:33] offset:{8*k}')
    def wave_sum(v, sdst, op='add'):
        for r in (8, 4, 2, 1): e(f'v_{op}_f32_dpp v{v}, v{v}, v{v} row_ror:{r} {D}')
        e(f'v_{op}_f32_dpp v{v}, v{v}, v{v} row_bcast:15 row_mask:0xa bank_mask:0xf')
        e(f'v_{op}_f32_dpp v{v}, v{v}, v{v} row_bcast:31 row_mask:0xc bank_mask:0xf')
        e(f'v_readlane_b32 s{sdst}, v{v}, 63')
    def rbf(d, s): e(f'v_cvt_pk_bf16_f32 v{d}, 0, v{s}')

    e('s_cmp_ge_u32 s2, 256')
    e('s_cbranch_scc1 END')
    e('s_load_dwordx16 s[8:23], s[0:1], 0')
    e('s_load_dwordx2 s[32:33], s[0:1], 96')
    e('s_load_dwordx8 s[24:31], s[0:1], 64')
    if stamps or hold: e('s_memrealtime s[64:65]')
    e('v_lshrrev_b32 v8, 6, v0')
    e('v_and_b32 v1, 63, v0')
    e('v_readfirstlane_b32 s35, v8')
    e('s_and_b32 s38, s2, 7')
    e('s_lshr_b32 s39, s2, 3')
    e('s_and_b32 s40, s39, 3')
    e('s_lshl_b32 s36, s38, 2')
    e('s_add_u32 s36, s36, s40')
    e('s_lshr_b32 s37, s39, 2')
    e('v_lshrrev_b32 v2, 4, v1')
    e('v_and_b32 v3, 15, v1')
    e('v_lshlrev_b32 v9, 4, v1')
    e('s_lshl_b32 s40, s37, 3'); e('s_add_u32 s40, s40, s35'); e('s_lshl_b32 s40, s40, 3')
    e('s_lshl_b32 s41, s40, 13'); e('s_lshl_b32 s42, s36, 8'); e('s_add_u32 s41, s41, s42')
    e('v_lshlrev_b32 v10, 14, v2'); e('v_lshl_add_u32 v10, v3, 4, v10'); e('v_add_u32 v10, s41, v10')
    e('v_add_u32 v11, 0x2000, v10')
    e('s_lshl_b32 s40, s40, 1'); e('v_lshl_add_u32 v12, v2, 2, s40')
    e('s_lshl_b32 s41, s36, 20'); e('s_lshl_b32 s42, s37, 15'); e('s_add_u32 s41, s41, s42'); e('s_add_u32 s51, s41, 0xC0000')
    e('s_lshl_b32 s42, s35, 12'); e('s_add_u32 s42, s42, s51')
    e('v_add_u32 v13, s42, v9')
    e('s_waitcnt lgkmcnt(0)')
    e('global_load_dwordx4 v[16:19], v9, s[8:9]')
    e('global_load_dword v20, v12, s[8:9]')
    e('global_load_dwordx4 v[24:27], v10, s[14:15] nt')
    e('global_load_dwordx4 v[28:31], v11, s[14:15] nt')
    e('s_load_dword s34, s[32:33], 0')
    e('s_barrier')
    for t in range(4): e(f'global_load_dwordx4 v[{32+4*t}:{35+4*t}], v13, s[10:11] offset:{1024*t} nt')
    e('s_mov_b32 s48, 0xffff0000'); e('s_mov_b32 s49, 0xffffff00'); e(f's_mov_b32 s50, {maxtry}')
    e('v_and_b32 v14, 1, v1'); e('v_lshlrev_b32 v14, 4, v14'); e('v_mov_b32 v15, 0xffff'); e('v_lshlrev_b32 v14, v14, v15')
    e('v_bfe_u32 v15, v1, 1, 2')
    for d in range(4):
        e(f'v_cmp_eq_u32 vcc, {d}, v15'); e(f'v_cndmask_b32 v{4+d}, 0, v14, vcc')
    e('v_and_b32 v14, 1, v2'); e('v_lshlrev_b32 v14, 4, v14'); e('v_lshl_add_u32 v14, v3, 5, v14')
    e('s_lshl_b32 s40, s35, 9'); e('v_add_u32 v14, s40, v14')
    e('s_waitcnt vmcnt(7)')
    for k in range(4):
        e(f'v_lshlrev_b32 v{48+2*k}, 16, v{16+k}'); e(f'v_and_b32 v{49+2*k}, s48, v{16+k}')
    e('v_add_f32 v56, v48, v49'); e('v_add_f32 v57, v50, v51'); e('v_add_f32 v58, v52, v53'); e('v_add_f32 v59, v54, v55')
    e('v_add_f32 v56, v56, v57'); e('v_add_f32 v58, v58, v59'); e('v_add_f32 v56, v56, v58')
    wave_sum(56, 40)
    e('v_mov_b32 v60, 0x3b000000')
    e('v_mul_f32 v57, s40, v60')
    for k in range(8): e(f'v_sub_f32 v{48+k}, v{48+k}, v57')
    e('v_mul_f32 v56, v48, v48'); e('v_mul_f32 v58, v49, v49')
    for k in range(2, 8, 2):
        e(f'v_fmac_f32 v56, v{48+k}, v{48+k}'); e(f'v_fmac_f32 v58, v{49+k}, v{49+k}')
    e('v_add_f32 v56, v56, v58')
    wave_sum(56, 40)
    rbf(57, 57)
    e('v_mul_f32 v58, s40, v60'); rbf(58, 58)
    e(f'v_add_f32 v58, 0x{EPS:x}, v58'); rbf(58, 58)
    e('v_sqrt_f32 v58, v58'); rbf(58, 58)
    e('v_rcp_f32 v58, v58')
    e('s_waitcnt vmcnt(6) lgkmcnt(0)')
    e('v_lshlrev_b32 v48, 16, v20'); e('v_and_b32 v49, s48, v20')
    e('v_sub_f32 v48, v48, v57'); e('v_sub_f32 v49, v49, v57'); rbf(48, 48); rbf(49, 49)
    e('v_mul_f32 v48, v48, v58'); e('v_mul_f32 v49, v49, v58')
    e('v_cvt_pk_bf16_f32 v48, v48, v48'); e('v_cvt_pk_bf16_f32 v49, v49, v49')
    for d in range(4): e(f'v_and_b32 v{52+d}, v48, v{4+d}')
    for d in range(4): e(f'v_and_b32 v{56+d}, v49, v{4+d}')
    e(f's_add_u32 s34, s34, 0x{TAGC:x}')
    e('s_and_b32 s44, s34, 0xff'); e('s_bfe_u32 s45, s34, 0x80008'); e('s_bfe_u32 s46, s34, 0x80010'); e('s_lshr_b32 s47, s34, 24')
    e('s_waitcnt vmcnt(5)')
    e('v_mfma_f32_16x16x32_bf16 v[48:51], v[52:55], v[24:27], 0')
    e('s_waitcnt vmcnt(4)')
    e('v_mfma_f32_16x16x32_bf16 v[48:51], v[56:59], v[28:31], v[48:51]')
    e('v_lshrrev_b32 v15, 2, v3'); e('v_lshl_add_u32 v15, v2, 5, v15'); e('s_lshl_b32 s40, s35, 2'); e('v_add_u32 v15, s40, v15')
    e('v_lshlrev_b32 v15, 2, v15')
    e('v_lshlrev_b32 v21, 4, v3')
    e('s_mov_b64 exec, 0xffffffff')
    e(f'ds_write_b128 v14, v[48:51] offset:{QP}')
    e('s_mov_b64 exec, -1')
    e('s_waitcnt lgkmcnt(0)')
    stamp(1)
    e('s_barrier')
    e('s_cmp_eq_u32 s35, 7')
    e('s_cbranch_scc1 LEAD1')
    e(f's_cmp_lg_u32 s35, {pollwave}')
    e('s_cbranch_scc1 JOIN2')
    e('s_lshl_b32 s40, s36, 12'); e(f's_add_u32 s40, s40, 0x{H1O:x}')
    e('v_add_u32 v22, s40, v9')
    e('v_and_b32 v23, 31, v1'); e('v_lshlrev_b32 v23, 3, v23'); e('v_lshrrev_b32 v48, 5, v1'); e('v_lshl_add_u32 v23, v48, 2, v23')
    e(f's_waitcnt vmcnt({pollwait})')
    stamp(2)
    e('QPOLL:')
    for t in range(4): e(f'global_load_dwordx4 v[{48+4*t}:{51+4*t}], v22, s[32:33] offset:{1024*t} sc1')
    e('s_waitcnt vmcnt(0)')
    for t in range(4):
        for k in range(4): e(f'v_xor_b32 v{48+4*t+k}, s{44+k}, v{48+4*t+k}')
    e('v_or3_b32 v64, v48, v49, v50')
    for k in range(51, 63, 2): e(f'v_or3_b32 v64, v64, v{k}, v{k+1}')
    e('v_or_b32 v64, v64, v63')
    e('v_and_b32 v64, 0xff, v64')
    e('v_cmp_ne_u32 vcc, 0, v64')
    e('s_cbranch_vccz QOK')
    e('s_sub_u32 s50, s50, 1')
    e('s_cbranch_scc0 QPOLL')
    e('QOK:')
    for k in range(4):
        e(f'v_add_f32 v{48+k}, v{48+k}, v{52+k}'); e(f'v_add_f32 v{56+k}, v{56+k}, v{60+k}')
    for k in range(4): e(f'v_add_f32 v{48+k}, v{48+k}, v{56+k}')
    e('v_permlane32_swap_b32 v48, v50'); e('v_permlane32_swap_b32 v49, v51')
    e('v_add_f32 v48, v48, v50'); e('v_add_f32 v49, v49, v51')
    e('v_cvt_pk_bf16_f32 v48, v48, v49')
    e(f'ds_write_b32 v23, v48 offset:{QF}')
    e('s_waitcnt lgkmcnt(0)')
    stamp(3)
    e('s_branch JOIN2')
    e('LEAD1:')
    e('v_lshrrev_b32 v22, 1, v1'); e('v_lshlrev_b32 v22, 4, v22')
    e('v_and_b32 v23, 1, v1'); e('v_lshl_add_u32 v23, v23, 11, v22')
    for k in range(4): e(f'ds_read_b128 v[{48+4*k}:{51+4*k}], v23 offset:{QP+512*k}')
    e('s_lshl_b32 s40, s36, 3'); e('s_add_u32 s40, s40, s37'); e('s_lshl_b32 s52, s40, 9')
    e(f's_add_u32 s40, s52, 0x{H1O:x}')
    e('v_add_u32 v22, s40, v22')
    e('v_add_u32 v64, s51, v9')
    e('v_add_u32 v64, 0x1000, v64')
    e('s_waitcnt lgkmcnt(0)')
    for k in range(4):
        e(f'v_add_f32 v{48+k}, v{48+k}, v{52+k}'); e(f'v_add_f32 v{56+k}, v{56+k}, v{60+k}')
    for k in range(4): e(f'v_add_f32 v{48+k}, v{48+k}, v{56+k}')
    for k in range(4): e(f'v_add_f32_dpp v{48+k}, v{48+k}, v{48+k} quad_perm:[1,0,3,2] {D}')
    for k in range(4): e(f'v_add_u32 v{48+k}, 0x80, v{48+k}')
    for k in range(4): e(f'v_and_b32 v{48+k}, s49, v{48+k}')
    for k in range(4): e(f'v_or_b32 v{48+k}, s{44+k}, v{48+k}')
    e('s_mov_b32 s40, 0x55555555'); e('s_mov_b32 s41, s40'); e('s_mov_b64 exec, s[40:41]')
    e('global_store_dwordx4 v22, v[48:51], s[32:33] sc1')
    e('s_mov_b64 exec, -1')
    stamp(4)
    VB = 96
    for t in range(32):
        e(f'global_load_dwordx4 v[{VB+4*t}:{VB+3+4*t}], v64, s[12:13] offset:{(t%8)*1024-4096} nt')
        if t % 8 == 7 and t < 31: e('v_add_u32 v64, 0x2000, v64')
    stamp(5)
    e('JOIN2:')
    e('s_barrier')
    e(f'ds_read_b128 v[48:51], v21 offset:{QF}')
    e('s_cmp_eq_u32 s35, 7')
    e('s_cbranch_scc1 KLEAD')
    e('s_waitcnt vmcnt(0)')
    e('KLEAD:')
    e('s_waitcnt vmcnt(33) lgkmcnt(0)')
    for k in range(4):
        for t in range(4):
            c = '0' if k == 0 else f'v{52+t}'
            e(f'v_dot2_f32_bf16 v{52+t}, v{32+4*t+k}, v{48+k}, {c}')
    e('v_add_f32_dpp v52, v52, v52 row_ror:8 row_mask:0xf bank_mask:0x3')
    e('v_add_f32_dpp v53, v53, v53 row_ror:8 row_mask:0xf bank_mask:0x3')
    e('v_add_f32_dpp v52, v54, v54 row_ror:8 row_mask:0xf bank_mask:0xc')
    e('v_add_f32_dpp v53, v55, v55 row_ror:8 row_mask:0xf bank_mask:0xc')
    e('v_add_f32_dpp v52, v52, v52 row_shl:4 row_mask:0xf bank_mask:0x5')
    e('v_add_f32_dpp v52, v53, v53 row_shr:4 row_mask:0xf bank_mask:0xa')
    e(f'v_add_f32_dpp v52, v52, v52 quad_perm:[1,0,3,2] {D}')
    e(f'v_add_f32_dpp v52, v52, v52 quad_perm:[2,3,0,1] {D}')
    rbf(52, 52); e(f'v_mul_f32 v52, 0x{SCALE:x}, v52'); rbf(52, 52)
    e(f'ds_write_b32 v15, v52 offset:{SC}')
    e('s_waitcnt lgkmcnt(0)')
    e('s_barrier')
    e('s_cmp_eq_u32 s35, 7')
    e('s_cbranch_scc0 NOTLEAD3')
    stamp(6)
    e('v_lshlrev_b32 v22, 3, v1')
    e(f'ds_read_b64 v[48:49], v22 offset:{SC}')
    e('v_lshlrev_b32 v23, 7, v2')
    e(f'v_mov_b32 v51, 0x{LOG2E:x}')
    e('s_waitcnt lgkmcnt(0)')
    e('v_max_f32 v50, v48, v49')
    wave_sum(50, 40, 'max')
    e('v_subrev_f32 v48, s40, v48'); e('v_subrev_f32 v49, s40, v49')
    e('v_mul_f32 v48, v48, v51'); e('v_mul_f32 v49, v49, v51')
    e('v_exp_f32 v48, v48'); e('v_exp_f32 v49, v49')
    e('v_cvt_pk_bf16_f32 v52, v48, v48'); e('v_cvt_pk_bf16_f32 v53, v49, v49')
    e(f'ds_write_b64 v22, v[52:53] offset:{SC}')
    e('v_add_f32 v50, v48, v49')
    PB = 64
    for k in range(8): e(f'ds_read_b128 v[{PB+4*k}:{PB+3+4*k}], v23 offset:{SC+16*k}')
    wave_sum(50, 41, 'add')
    e('s_lshr_b32 s42, s52, 5'); e(f's_add_u32 s42, s42, 0x{H2LO:x}')
    e('v_mov_b32 v48, s40'); e('v_mov_b32 v50, s34'); e('v_mov_b32 v51, s34'); e('v_mov_b32 v52, s42'); e('v_mov_b32 v49, s41')
    e('s_mov_b64 exec, 1')
    e('global_store_dwordx4 v52, v[48:51], s[32:33] sc1')
    e('s_mov_b64 exec, -1')
    e('v_lshrrev_b32 v22, 2, v3'); e('v_lshlrev_b32 v22, 7, v22'); e('v_lshl_add_u32 v22, v2, 6, v22')
    e('v_and_b32 v23, 3, v3'); e('v_lshl_add_u32 v22, v23, 4, v22')
    e(f's_add_u32 s42, s52, 0x{H2O:x}'); e('v_add_u32 v22, s42, v22')
    e('v_mov_b32 v24, s34'); e('v_mov_b32 v25, s34'); e('v_mov_b32 v28, s34'); e('v_mov_b32 v29, s34')
    e('s_waitcnt lgkmcnt(0)')
    stamp(7)
    for t in range(32):
        a = 32 + 4 * (t & 1)
        for d in range(4): e(f'v_and_b32 v{a+d}, v{PB+t}, v{4+d}')
        e(f's_waitcnt vmcnt({31-t+1})')
        c = '0' if t == 0 else 'v[40:43]'
        e(f'v_mfma_f32_16x16x32_bf16 v[40:43], v[{a}:{a+3}], v[{VB+4*t}:{VB+3+4*t}], {c}')
    e('s_mov_b32 s40, 0xffff0000'); e('s_mov_b32 s41, 0')
    e('v_cvt_pk_bf16_f32 v26, v40, v41'); e('v_cvt_pk_bf16_f32 v27, v42, v43')
    e('s_mov_b64 exec, 0xffff')
    e('global_store_dwordx4 v22, v[24:27], s[32:33] sc1')
    e('s_mov_b64 exec, s[40:41]')
    e('global_store_dwordx4 v22, v[26:29], s[32:33] sc1')
    e('s_mov_b64 exec, -1')
    stamp(8)
    e('NOTLEAD3:')
    e('s_cmp_lt_u32 s39, 16')
    e('s_cbranch_scc1 OPROJ')
    e('s_sub_u32 s53, s2, 128')
    e('s_cmp_lt_u32 s53, 43')
    e('s_cbranch_scc1 FFN')
    e('FIN:')
    if stamps:
        e('s_cmp_eq_u32 s35, 7'); e('s_cbranch_scc0 FIN_A'); flush([4, 5, 6, 7, 8]); e('s_endpgm')
        e('FIN_A:')
        e(f's_cmp_eq_u32 s35, {pollwave}'); e('s_cbranch_scc0 FIN_B'); flush([2, 3]);
        e('FIN_B:')
        e('s_cmp_eq_u32 s35, 0'); e('s_cbranch_scc0 END'); flush([0, 1]);
    e('END:')
    e('s_endpgm')

    e('OPROJ:')
    e('s_cmp_eq_u32 s35, 7')
    e('s_cbranch_scc1 OP_LEAD')
    e('s_cmp_ge_u32 s35, 4')
    e('s_cbranch_scc1 FIN')
    e('s_lshr_b32 s40, s35, 1'); e('s_and_b32 s41, s35, 1')
    e('s_lshl_b32 s42, s38, 19'); e('s_lshl_b32 s43, s40, 18'); e('s_add_u32 s42, s42, s43')
    e('s_lshl_b32 s43, s41, 16'); e('s_add_u32 s42, s42, s43'); e('s_lshl_b32 s43, s39, 6'); e('s_add_u32 s42, s42, s43')
    e('v_lshrrev_b32 v22, 2, v1'); e('v_lshlrev_b32 v22, 10, v22'); e('v_and_b32 v23, 3, v1'); e('v_lshl_add_u32 v22, v23, 4, v22')
    e('v_add_u32 v22, s42, v22')
    e('s_lshl_b32 s43, s35, 13'); e(f's_add_u32 s43, s43, {WB}')
    e('s_mov_b32 m0, s43')
    for q in range(8):
        e('global_load_lds_dwordx4 v22, s[16:17] nt')
        if q < 7:
            e('s_add_u32 m0, m0, 1024')
            e(f'v_add_u32 v22, 0x{(0x4000 if q != 3 else 0x20000 - 3*0x4000):x}, v22')
    e('v_lshrrev_b32 v23, 2, v3'); e('v_lshlrev_b32 v23, 6, v23'); e('v_lshl_add_u32 v23, v2, 9, v23')
    e('v_and_b32 v24, 3, v3'); e('v_lshl_add_u32 v23, v24, 3, v23'); e('v_add_u32 v23, s43, v23')
    e('v_and_b32 v24, 1, v2'); e('v_lshlrev_b32 v24, 2, v24'); e('v_and_b32 v25, 7, v3'); e('v_xor_b32 v24, v24, v25')
    e('v_lshrrev_b32 v25, 1, v2'); e('v_lshl_add_u32 v24, v25, 3, v24'); e('v_lshlrev_b32 v24, 4, v24')
    e('s_lshl_b32 s42, s38, 1'); e('s_add_u32 s42, s42, s40')
    e('s_lshl_b32 s43, s42, 8'); e(f's_add_u32 s43, s43, 0x{H2LO:x}'); e('v_add_u32 v24, s43, v24')
    e('s_lshl_b32 s43, s42, 13'); e('s_lshl_b32 s42, s41, 8'); e('s_add_u32 s43, s43, s42'); e(f's_add_u32 s43, s43, 0x{H2O:x}')
    e('v_lshlrev_b32 v25, 9, v3'); e('v_lshl_add_u32 v25, v2, 4, v25'); e('v_add_u32 v25, s43, v25')
    e('v_lshrrev_b32 v26, 1, v2'); e('v_lshl_add_u32 v26, v26, 4, v3'); e('v_lshlrev_b32 v26, 5, v26')
    e('v_and_b32 v27, 1, v2'); e('v_lshl_add_u32 v26, v27, 2, v26'); e('s_lshl_b32 s42, s35, 3'); e('v_add_u32 v26, s42, v26')
    e('v_lshrrev_b32 v27, 1, v1'); e('v_and_b32 v28, 3, v27'); e('v_lshlrev_b32 v28, 3, v28'); e('v_lshrrev_b32 v28, v28, s34'); e('v_and_b32 v28, 0xff, v28')
    e('s_lshl_b32 s42, s38, 11'); e('s_lshl_b32 s43, s39, 7'); e('s_add_u32 s42, s42, s43'); e(f's_add_u32 s42, s42, 0x{H3O:x}')
    e('v_lshlrev_b32 v27, 2, v27'); e('v_add_u32 v27, s42, v27')
    for r in range(8): e(f'v_mov_b32 v{40+r}, 0')
    e('s_waitcnt vmcnt(0)')
    BB = 96
    for hb in range(2):
        for tt in range(2):
            for cg in range(2):
                b = BB + ((hb * 2 + tt) * 2 + cg) * 4
                for a in range(2):
                    e(f'ds_read_b64_tr_b16 v[{b+2*a}:{b+2*a+1}], v23 offset:{hb*4096+tt*2048+a*256+cg*32}')
    stamp(9)
    e('s_barrier')
    e('LPOLL:')
    e('global_load_dwordx4 v[48:51], v24, s[32:33] sc1')
    e('s_waitcnt vmcnt(0)')
    e('v_cmp_ne_u32 vcc, s34, v51')
    e('s_cbranch_vccz LOK')
    e('s_sub_u32 s50, s50, 1')
    e('s_cbranch_scc0 LPOLL')
    e('LOK:')
    def opoll():
        for tt in range(2):
            for ty in range(2):
                b = 64 + tt * 8 + ty * 4
                e(f'global_load_dwordx4 v[{b}:{b+3}], v25, s[32:33] offset:{tt*128+ty*64} sc1')
    opoll()
    e(f'v_max_f32_dpp v52, v48, v48 quad_perm:[1,0,3,2] {D}')
    e(f'v_max_f32_dpp v52, v52, v52 quad_perm:[2,3,0,1] {D}')
    e(f'v_max_f32_dpp v52, v52, v52 row_half_mirror {D}')
    e('v_sub_f32 v52, v48, v52'); e(f'v_mul_f32 v52, 0x{LOG2E:x}, v52'); e('v_exp_f32 v52, v52')
    e('v_mul_f32 v53, v52, v49')
    e(f'v_add_f32_dpp v53, v53, v53 quad_perm:[1,0,3,2] {D}')
    e(f'v_add_f32_dpp v53, v53, v53 quad_perm:[2,3,0,1] {D}')
    e(f'v_add_f32_dpp v53, v53, v53 row_half_mirror {D}')
    e('v_rcp_f32 v53, v53'); e('v_mul_f32 v52, v52, v53')
    for r in range(4):
        e(f'v_mov_b32_dpp v{40+r}, v52 row_newbcast:{r} row_mask:0x3 bank_mask:0xf')
        e(f'v_mov_b32_dpp v{44+r}, v52 row_newbcast:{r} row_mask:0xc bank_mask:0xf')
    stamp(10)
    e('s_branch OWAIT')
    e('OPOLL:')
    opoll()
    e('OWAIT:')
    e('s_waitcnt vmcnt(0) lgkmcnt(0)')
    e('v_cmp_ne_u32 s[40:41], s34, v64'); e('v_cmp_ne_u32 s[42:43], s34, v71')
    e('v_cmp_ne_u32 s[54:55], s34, v72'); e('v_cmp_ne_u32 vcc, s34, v79')
    e('s_or_b64 s[40:41], s[40:41], s[42:43]'); e('s_or_b64 vcc, vcc, s[54:55]'); e('s_or_b64 vcc, vcc, s[40:41]')
    e('s_cbranch_scc0 OOK')
    e('s_sub_u32 s50, s50, 1')
    e('s_cbranch_scc0 OPOLL')
    e('OOK:')
    stamp(11)
    for tt in range(2):
        for hb in range(2):
            for cg in range(2):
                b = BB + ((hb * 2 + tt) * 2 + cg) * 4
                d = 80 + (hb * 2 + cg) * 4
                c = '0' if tt == 0 else f'v[{d}:{d+3}]'
                e(f'v_mfma_f32_16x16x32_bf16 v[{d}:{d+3}], v[{66+8*tt}:{69+8*tt}], v[{b}:{b+3}], {c}')
    e('v_mul_f32 v48, v40, v80'); e('v_mul_f32 v49, v40, v84')
    for r in range(1, 4):
        e(f'v_fmac_f32 v48, v{40+r}, v{80+r}'); e(f'v_fmac_f32 v49, v{40+r}, v{84+r}')
    for r in range(4):
        e(f'v_fmac_f32 v48, v{44+r}, v{88+r}'); e(f'v_fmac_f32 v49, v{44+r}, v{92+r}')
    e('v_permlane32_swap_b32 v48, v49')
    e('v_add_f32 v48, v48, v49')
    e(f'ds_write_b32 v26, v48 offset:{RED}')
    e('s_waitcnt lgkmcnt(0)')
    e('s_barrier')
    e('s_cmp_lg_u32 s35, 0')
    e('s_cbranch_scc1 FIN')
    e(f'ds_read_b128 v[48:51], v9 offset:{RED}')
    e('s_mov_b32 s40, 0x55555555'); e('s_mov_b32 s41, s40')
    e('s_waitcnt lgkmcnt(0)')
    e('v_add_f32 v48, v48, v49'); e('v_add_f32 v50, v50, v51'); e('v_add_f32 v48, v48, v50')
    e(f'v_add_f32_dpp v48, v48, v48 quad_perm:[1,0,3,2] {D}')
    e('v_add_u32 v48, 0x80, v48')
    e('v_and_or_b32 v48, v48, s49, v28')
    e('s_mov_b64 exec, s[40:41]')
    e('global_store_dword v27, v48, s[32:33] sc1')
    stamp(12)
    flush([9, 10, 11, 12])
    e('s_mov_b64 exec, -1')
    e('s_branch FIN')
    e('OP_LEAD:')
    e('s_barrier')
    e('s_branch FIN')

    e('FFN:')
    e('s_mul_i32 s40, s35, 64*2752'); e('s_lshl_b32 s41, s53, 6'); e('s_add_u32 s40, s40, s41')
    e('s_movk_i32 s42, 2752')
    e('v_lshrrev_b32 v22, 2, v1'); e('v_and_b32 v23, 3, v1'); e('v_lshlrev_b32 v23, 4, v23'); e('v_mad_u32_u24 v22, v22, s42, v23')
    e('v_add_u32 v22, s40, v22')
    e('s_lshl_b32 s43, s35, 12'); e(f's_add_u32 s43, s43, {WB}')
    e('s_mov_b32 m0, s43')
    for q in range(4):
        e('global_load_lds_dwordx4 v22, s[20:21] nt')
        if q < 3:
            e('s_add_u32 m0, m0, 1024'); e(f'v_add_u32 v22, {16*2752}, v22')
    e('v_lshrrev_b32 v24, 3, v1')
    e('v_and_b32 v25, 7, v1')
    e('v_lshlrev_b32 v26, 12, v24'); e('v_lshl_add_u32 v26, v25, 4, v26')
    e('s_lshl_b32 s40, s53, 15'); e('s_lshl_b32 s41, s35, 7'); e('s_add_u32 s40, s40, s41'); e('v_add_u32 v26, s40, v26')
    e('v_sub_u32 v27, 7, v25'); e('v_min_u32 v27, v27, v25'); e('v_lshl_add_u32 v27, v24, 2, v27')
    e('s_lshl_b32 s41, s53, 6'); e('v_lshl_add_u32 v28, v27, 1, s41')
    e('v_lshrrev_b32 v29, 2, v25'); e('v_lshlrev_b32 v29, 4, v29'); e('v_lshl_add_u32 v27, v27, 5, v29')
    e('v_lshrrev_b32 v29, 3, v3'); e('v_lshlrev_b32 v29, 6, v29'); e('v_lshl_add_u32 v29, v2, 4, v29')
    e('v_and_b32 v30, 1, v3'); e('v_lshl_add_u32 v29, v30, 3, v29'); e('v_and_b32 v31, 4, v3'); e('v_add_u32 v29, v29, v31')
    e('s_lshl_b32 s41, s35, 7'); e('v_add_u32 v29, s41, v29')
    e('v_lshrrev_b32 v31, 1, v3'); e('v_lshlrev_b32 v31, 11, v31'); e('v_lshl_add_u32 v31, v2, 5, v31'); e('v_lshl_add_u32 v31, v30, 4, v31')
    e('s_lshl_b32 s41, s35, 8'); e(f's_add_u32 s41, s41, 0x{H3O:x}'); e('v_add_u32 v31, s41, v31')
    e('s_barrier')
    for t in range(4): e(f'global_load_dwordx4 v[{112+4*t}:{115+4*t}], v26, s[24:25] offset:{1024*t} nt')
    e('global_load_ushort v32, v28, s[22:23]')
    e('global_load_dword v33, v29, s[8:9]')
    e('v_and_b32 v34, 3, v1'); e('v_lshl_add_u32 v34, v34, 2, v2'); e('s_and_b32 s41, s53, 31'); e('s_lshl_b32 s41, s41, 5'); e('v_lshl_add_u32 v34, v34, 1, s41')
    e('global_load_ushort v35, v34, s[26:27]')
    e('v_lshrrev_b32 v23, 2, v3'); e('v_lshlrev_b32 v23, 6, v23'); e('v_lshl_add_u32 v23, v2, 9, v23')
    e('v_and_b32 v36, 3, v3'); e('v_lshl_add_u32 v23, v36, 3, v23'); e('v_add_u32 v23, s43, v23')
    e('s_lshl_b32 s41, s35, 2'); e('v_lshl_add_u32 v36, v3, 5, s41')
    e(f'v_mov_b32 v37, {DUM-RED}'); e('v_cmp_gt_u32 vcc, 16, v1'); e('v_cndmask_b32 v36, v37, v36, vcc')
    e('v_lshrrev_b32 v37, 3, v3'); e('v_lshl_add_u32 v37, v37, 5, s41')
    e('v_and_b32 v38, 3, v1'); e('v_lshlrev_b32 v38, 4, v38')
    e('v_and_b32 v39, 1, v2'); e('v_lshlrev_b32 v39, 4, v39'); e('v_lshl_add_u32 v39, v25, 5, v39')
    e('v_lshrrev_b32 v40, 1, v2'); e('v_lshl_add_u32 v39, v40, 3, v39')
    e('s_lshl_b32 s40, s53, 11'); e('s_lshl_b32 s41, s35, 8'); e('s_add_u32 s40, s40, s41'); e(f's_add_u32 s40, s40, 0x{H4O:x}'); e('v_add_u32 v39, s40, v39')
    e('v_lshlrev_b32 v40, 4, v40'); e('v_lshrrev_b32 v40, v40, s34'); e('v_bfe_u32 v41, v40, 8, 8'); e('v_and_b32 v40, 0xff, v40')
    e('v_lshrrev_b32 v42, 2, v1'); e('v_lshlrev_b32 v42, 11, v42'); e('v_add_u32 v42, v42, v38')
    e('s_lshl_b32 s40, s53, 6'); e(f's_add_u32 s40, s40, 0x{H4O:x}'); e('v_add_u32 v42, s40, v42')
    e('v_add_u32 v43, 0x8000, v42'); e('v_add_u32 v44, 0x10000, v42')
    for d in range(4): e(f'v_mov_b32 v{48+d}, 0x3f803f80')
    e('s_waitcnt vmcnt(7)')
    for u in range(2):
        for cg in range(2):
            b = BB + (u * 2 + cg) * 4
            for a in range(2):
                e(f'ds_read_b64_tr_b16 v[{b+2*a}:{b+2*a+1}], v23 offset:{a*2048+u*256+cg*32}')
    e('s_waitcnt lgkmcnt(0)')
    e(f'v_mfma_f32_16x16x32_bf16 v[80:83], v[48:51], v[{BB}:{BB+3}], 0')
    e(f'v_mfma_f32_16x16x32_bf16 v[84:87], v[48:51], v[{BB+4}:{BB+7}], 0')
    e(f'v_mfma_f32_16x16x32_bf16 v[80:83], v[48:51], v[{BB+8}:{BB+11}], v[80:83]')
    e(f'v_mfma_f32_16x16x32_bf16 v[84:87], v[48:51], v[{BB+12}:{BB+15}], v[84:87]')
    e(f'ds_write_b32 v36, v80 offset:{RED}'); e(f'ds_write_b32 v36, v84 offset:{RED+512}')
    e('s_waitcnt lgkmcnt(0)')
    e('s_barrier')
    e(f'ds_read_b128 v[52:55], v27 offset:{RED}')
    e('s_waitcnt lgkmcnt(0)')
    e('v_add_f32 v52, v52, v53'); e('v_add_f32 v54, v54, v55'); e('v_add_f32 v45, v52, v54')
    e(f'v_add_f32_dpp v45, v45, v45 row_half_mirror {D}')
    e('s_barrier')
    e('s_waitcnt vmcnt(0)')
    e('v_lshlrev_b32 v32, 16, v32'); e('v_lshlrev_b32 v35, 16, v35')
    e('v_lshlrev_b32 v46, 16, v33'); e('v_and_b32 v47, s48, v33')
    e('v_mov_b32 v60, 0x3b000000')
    stamp(9)
    e('HPOLL:')
    e('global_load_dwordx4 v[64:67], v31, s[32:33] sc1')
    e('global_load_dwordx4 v[68:71], v31, s[32:33] offset:128 sc1')
    e('s_waitcnt vmcnt(0)')
    for k in range(8): e(f'v_xor_b32 v{64+k}, s{44+(k&3)}, v{64+k}')
    e('v_or3_b32 v72, v64, v65, v66'); e('v_or3_b32 v73, v67, v68, v69'); e('v_or3_b32 v72, v72, v70, v71')
    e('v_or_b32 v72, v72, v73'); e('v_and_b32 v72, 0xff, v72')
    e('v_cmp_ne_u32 vcc, 0, v72')
    e('s_cbranch_vccz HOK')
    e('s_sub_u32 s50, s50, 1')
    e('s_cbranch_scc0 HPOLL')
    e('HOK:')
    stamp(10)
    for k in range(4): e(f'v_add_f32_dpp v{64+k}, v{64+k}, v{64+k} row_ror:8 row_mask:0xf bank_mask:0x3')
    for k in range(4): e(f'v_add_f32_dpp v{64+k}, v{68+k}, v{68+k} row_ror:8 row_mask:0xf bank_mask:0xc')
    for k in range(2): e(f'v_add_f32_dpp v{64+k}, v{64+k}, v{64+k} row_shl:4 row_mask:0xf bank_mask:0x5')
    for k in range(2): e(f'v_add_f32_dpp v{64+k}, v{66+k}, v{66+k} row_shr:4 row_mask:0xf bank_mask:0xa')
    for k in range(2): e(f'v_add_f32_dpp v{64+k}, v{64+k}, v{64+k} quad_perm:[2,3,0,1] {D}')
    rbf(64, 64); rbf(65, 65)
    e('v_add_f32 v64, v64, v46'); e('v_add_f32 v65, v65, v47')
    e('v_cvt_pk_bf16_f32 v72, v64, v65')
    for d in range(1, 4): e(f'v_mov_b32_dpp v{72+d}, v72 row_ror:{16-4*d} {D}')
    e(f'ds_write_b32 v29, v72 offset:{HB}')
    for u in range(2):
        for cg in range(2):
            b = BB + (u * 2 + cg) * 4; d = 80 + (u * 2 + cg) * 4
            e(f'v_mfma_f32_16x16x32_bf16 v[{d}:{d+3}], v[72:75], v[{b}:{b+3}], 0')
    e('v_dot2_f32_bf16 v64, v72, v48, 0'); e('v_dot2_f32_bf16 v65, v72, v72, 0')
    e('v_add_f32_dpp v64, v64, v64 row_ror:8 row_mask:0xf bank_mask:0x3')
    e('v_add_f32_dpp v64, v65, v65 row_ror:8 row_mask:0xf bank_mask:0xc')
    e(f'v_add_f32_dpp v64, v64, v64 row_half_mirror {D}')
    e(f'v_add_f32_dpp v64, v64, v64 quad_perm:[1,0,3,2] {D}')
    e('v_mov_b32 v65, v64'); e('v_permlane32_swap_b32 v64, v65'); e('v_add_f32 v64, v64, v65')
    e('v_mov_b32 v65, v64'); e('v_permlane16_swap_b32 v64, v65'); e('v_add_f32 v64, v64, v65')
    e(f'ds_write_b32 v37, v64 offset:{ST}')
    e('v_add_f32 v80, v80, v89'); e('v_add_f32 v84, v84, v93')
    e(f'ds_write_b32 v36, v80 offset:{RED}'); e(f'ds_write_b32 v36, v84 offset:{RED+512}')
    e('s_waitcnt lgkmcnt(0)')
    e('s_barrier')
    e(f'ds_read_b128 v[56:59], v38 offset:{ST}')
    e(f'ds_read_b128 v[52:55], v27 offset:{RED}')
    e(f'ds_read_u16 v61, v34 offset:{HB}')
    e('s_waitcnt lgkmcnt(2)')
    e('v_add_f32 v56, v56, v57'); e('v_add_f32 v58, v58, v59'); e('v_add_f32 v56, v56, v58')
    e(f'v_add_f32_dpp v56, v56, v56 quad_perm:[1,0,3,2] {D}')
    e('s_waitcnt lgkmcnt(1)')
    e('v_add_f32 v52, v52, v53'); e('v_add_f32 v54, v54, v55')
    e(f'v_mul_f32_dpp v57, v56, v60 quad_perm:[0,0,0,0] {D}')
    e(f'v_mul_f32_dpp v58, v56, v60 quad_perm:[2,2,2,2] {D}')
    e('v_add_f32 v52, v52, v54')
    e('v_fma_f32 v58, -v57, v57, v58')
    e('v_max_f32 v58, 0, v58')
    rbf(58, 58)
    e(f'v_add_f32_dpp v52, v52, v52 row_half_mirror {D}')
    e(f'v_add_f32 v58, 0x{EPS:x}, v58'); rbf(58, 58)
    e('v_sqrt_f32 v58, v58')
    rbf(57, 57)
    rbf(58, 58)
    e('v_rcp_f32 v58, v58')
    e('v_fma_f32 v52, -v57, v45, v52')
    e('v_mul_f32 v52, v52, v58'); rbf(52, 52)
    e('v_add_f32 v52, v52, v32'); rbf(52, 52)
    e('v_max_f32 v52, 0, v52'); e('v_mul_f32 v52, v52, v52')
    e('v_cvt_pk_bf16_f32 v52, v52, v52')
    for t in range(4):
        a = 64 + 4 * t
        for d in range(4):
            s = t if d < 2 else 3 - t
            e(f'v_and_b32_dpp v{a+d}, v52, v{4+d} quad_perm:[{s},{s},{s},{s}] {D}')
    for t in range(4):
        a = 64 + 4 * t
        c = '0' if t == 0 else 'v[80:83]'
        e(f'v_mfma_f32_16x16x32_bf16 v[80:83], v[{a}:{a+3}], v[{112+4*t}:{115+4*t}], {c}')
    e('s_mov_b32 s40, 0x00ff00ff'); e('s_mov_b32 s41, s40')
    e('v_permlane32_swap_b32 v80, v82'); e('v_permlane32_swap_b32 v81, v83')
    e(f'v_add_f32_dpp v80, v82, v80 row_ror:8 {D}'); e(f'v_add_f32_dpp v81, v83, v81 row_ror:8 {D}')
    e('v_add_u32 v80, 0x80, v80'); e('v_add_u32 v81, 0x80, v81')
    e('v_and_or_b32 v80, v80, s49, v40'); e('v_and_or_b32 v81, v81, s49, v41')
    e('s_mov_b64 exec, s[40:41]')
    e('global_store_dwordx2 v39, v[80:81], s[32:33] sc1')
    e('s_mov_b64 exec, -1')
    stamp(11)
    e('s_cmp_lg_u32 s35, 0')
    e('s_cbranch_scc1 FIN')
    e('s_cmp_ge_u32 s53, 32')
    e('s_cbranch_scc1 FFIN')
    e('s_waitcnt lgkmcnt(0)')
    e('v_lshlrev_b32 v61, 16, v61')
    e('s_mov_b32 s42, -1'); e('s_mov_b32 s43, 0xfff')
    e('FPOLL:')
    e('global_load_dwordx4 v[64:67], v42, s[32:33] sc1')
    e('global_load_dwordx4 v[68:71], v43, s[32:33] sc1')
    for k in range(4): e(f'v_mov_b32 v{72+k}, s{44+k}')
    e('s_mov_b64 exec, s[42:43]')
    e('global_load_dwordx4 v[72:75], v44, s[32:33] sc1')
    e('s_mov_b64 exec, -1')
    e('s_waitcnt vmcnt(0)')
    for k in range(12): e(f'v_xor_b32 v{64+k}, s{44+(k&3)}, v{64+k}')
    e('v_or3_b32 v76, v64, v65, v66'); e('v_or3_b32 v77, v67, v68, v69'); e('v_or3_b32 v76, v76, v70, v71'); e('v_or3_b32 v77, v77, v72, v73')
    e('v_or3_b32 v76, v76, v74, v75'); e('v_or_b32 v76, v76, v77'); e('v_and_b32 v76, 0xff, v76')
    e('v_cmp_ne_u32 vcc, 0, v76')
    e('s_cbranch_vccz FOK')
    e('s_sub_u32 s50, s50, 1')
    e('s_cbranch_scc0 FPOLL')
    e('FOK:')
    stamp(12)
    for k in range(4): e(f'v_add_f32 v{64+k}, v{64+k}, v{68+k}')
    for k in range(4): e(f'v_add_f32 v{64+k}, v{64+k}, v{72+k}')
    e('v_permlane32_swap_b32 v64, v66'); e('v_permlane32_swap_b32 v65, v67')
    e('v_add_f32 v64, v64, v66'); e('v_add_f32 v65, v65, v67')
    e('v_permlane16_swap_b32 v64, v65')
    e('v_add_f32 v64, v64, v65')
    e(f'v_add_f32_dpp v64, v64, v64 row_ror:8 {D}'); e(f'v_add_f32_dpp v64, v64, v64 row_ror:4 {D}')
    rbf(64, 64); e('v_add_f32 v64, v64, v35'); rbf(64, 64); e('v_add_f32 v64, v64, v61')
    e('v_cvt_pk_bf16_f32 v64, v64, v64')
    e('s_mov_b32 s40, 0x000f000f'); e('s_mov_b32 s41, s40'); e('s_mov_b64 exec, s[40:41]')
    e('global_store_short v34, v64, s[28:29]')
    e('s_cmp_lg_u32 s53, 0')
    e('s_cbranch_scc1 FFIN')
    e('s_mov_b64 exec, 1')
    e('v_mov_b32 v65, 0'); e('v_mov_b32 v66, s34')
    e('global_store_dword v65, v66, s[32:33]')
    e('FFIN:')
    if hold:
        e('HOLD:'); e('s_memrealtime s[66:67]'); e('s_waitcnt lgkmcnt(0)'); e('s_sub_u32 s66, s66, s64'); e(f's_cmp_lt_u32 s66, {hold}'); e('s_cbranch_scc1 HOLD')
    stamp(13)
    flush([9, 10, 11, 12, 13])
    e('s_branch FIN')
    out, npad = pad(L)
    return wrap('\n'.join(out), 256, 512, LDS, 256 if stamps else 224), npad

if __name__ == '__main__':
    s, n = gen(); open('v1.s', 'w').write(s); print('pad', n)
    s, n = gen(stamps=True); open('v1s.s', 'w').write(s)
    s, n = gen(hold=3000); open('v1h30.s', 'w').write(s)
    s, n = gen(hold=1500); open('v1h15.s', 'w').write(s)
```

```python
import re
NAME = 'sequential_preLN__sliding_block_cached__dense_activation_squared_relu__decode'

def regs_of(tok):
    tok = tok.strip()
    m = re.fullmatch(r'([vs])(\d+)', tok)
    if m: return [(m.group(1), int(m.group(2)))]
    m = re.fullmatch(r'([vs])\[(\d+):(\d+)\]', tok)
    if m: return [(m.group(1), i) for i in range(int(m.group(2)), int(m.group(3)) + 1)]
    if tok == 'vcc': return [('s', 'vcc')]
    if tok == 'exec': return [('s', 'exec')]
    if tok == 'm0': return [('s', 'm0')]
    return []

TRANS = ('v_exp_f32', 'v_log_f32', 'v_rcp_f32', 'v_rsq_f32', 'v_sqrt_f32')
class Ins:
    def __init__(s, text):
        s.text = text
        t = text.split(';')[0].strip()
        s.label = t.endswith(':')
        s.dirv = t.startswith('.') or t == ''
        parts = t.split(None, 1)
        s.op = parts[0] if parts else ''
        rest = parts[1] if len(parts) > 1 else ''
        ops = [o.strip() for o in re.split(r',\s*(?![^\[]*\])', rest)] if rest else []
        if ops:
            ops[-1] = ops[-1].split()[0]
        s.ops = ops
        op = s.op
        s.mfma = op.startswith('v_mfma')
        s.valu = op.startswith('v_') and not s.mfma
        s.dpp = s.valu and bool(re.search(r'quad_perm|row_|wave_', t))
        s.trans = any(op.startswith(x) for x in TRANS)
        s.dot = op.startswith('v_dot')
        s.perml = op.startswith('v_permlane')
        s.rdl = op.startswith('v_readlane') or op.startswith('v_readfirstlane') or op.startswith('v_writelane')
        s.vmem = op.startswith('global_') or op.startswith('buffer_')
        s.ds = op.startswith('ds_')
        s.salu = op.startswith('s_')
        s.ldsdma = s.vmem and ('_lds_' in op)
        s.opsel = 'op_sel' in t or 'dst_sel' in t
        s.w = []; s.r = []; s.srcC = []; s.srcAB = []; s.stdata = []
        R = [regs_of(o) for o in ops]
        if s.mfma:
            s.w = R[0]; s.srcAB = R[1] + R[2]; s.srcC = R[3]; s.r = s.srcAB + s.srcC
        elif s.valu:
            if s.perml:
                s.w = R[0] + R[1]; s.r = R[0] + R[1]
            else:
                s.w = list(R[0]); s.r = sum(R[1:], [])
                if op.startswith('v_cmp') and False: pass
                if s.dpp or op.startswith('v_fmac') or op.startswith('v_writelane') or op.startswith('v_dot2c'): s.r += R[0]
                if s.dot: s.srcC = R[3] if len(R) > 3 else R[0]; s.srcAB = R[1] + R[2]
                if op.startswith('v_cmpx'): s.w.append(('s', 'exec'))
        elif s.vmem:
            if 'store' in op:
                s.r = sum(R, [])
                if 'x3' in op or 'x4' in op: s.stdata = R[1] if op.startswith('global') else R[0]
            elif s.ldsdma:
                s.r = sum(R, [])
            else:
                s.w = R[0]; s.r = sum(R[1:], [])
        elif s.ds:
            if 'write' in op: s.r = sum(R, [])
            else: s.w = R[0]; s.r = sum(R[1:], [])
        elif s.salu and ops:
            if op.startswith(('s_cmp', 's_cbranch', 's_branch', 's_waitcnt', 's_nop', 's_bitcmp')): s.r = sum(R, [])
            else: s.w = R[0]; s.r = sum(R[1:], [])
        s.states = 1
        if op == 's_nop': s.states = int(ops[0]) + 1
        if s.label or s.dirv: s.states = 0

def need(p, c):
    n = 0
    pw = set(p.w); cr = set(c.r); cw = set(c.w)
    pv = {x for x in pw if x[0] == 'v'}; ps = {x for x in pw if x[0] == 's'}
    if p.valu:
        if c.dpp and pv & cr: n = max(n, 2)
        if c.dpp and ('s', 'exec') in ps: n = max(n, 5)
        if c.valu and ps & cr: n = max(n, 4 if c.rdl else 2)
        if c.vmem and ps & cr: n = max(n, 5)
        if c.rdl and pv & cr: n = max(n, 1)
        if p.trans and (c.valu or c.mfma) and pv & cr: n = max(n, 1)
        if c.perml and pv & cr: n = max(n, 2)
        if p.opsel and c.valu and pv & (cr | cw): n = max(n, 1)
        if c.mfma and pv & cr: n = max(n, 2)
        if p.dot:
            if c.dot and c.op == p.op:
                if pv & set(c.srcAB): n = max(n, 3)
            elif pv & (cr | cw): n = max(n, 3)
    if p.stdata and (set(p.stdata) & cw): n = max(n, 2)
    if p.salu and ('s', 'm0') in pw and c.ldsdma: n = max(n, 1)
    if p.mfma:
        if c.mfma:
            if pv & set(c.srcAB): n = max(n, 8)
            if pv & set(c.srcC) and list(p.w) != list(c.srcC): n = max(n, 6)
            if pv & cw and list(p.w) != list(c.srcC): n = max(n, 8)
        elif (c.valu or c.vmem or c.ds) and pv & (cr | cw): n = max(n, 8)
        if c.valu and set(p.srcC) & cw: n = max(n, 3)
    return n

def pad(lines):
    out = []; hist = []
    npad = 0
    for ln in lines:
        c = Ins(ln)
        if c.label or c.dirv:
            out.append(ln); continue
        dist = 0; req = 0
        for p in reversed(hist[-12:]):
            k = need(p, c) - dist
            req = max(req, k)
            dist += p.states
            if dist >= 10: break
        if req > 0:
            nop = Ins(f's_nop {req-1}'); out.append(f'  s_nop {req-1}'); hist.append(nop); npad += req
        out.append('  ' + ln); hist.append(c)
        if c.op in ('s_branch', 's_endpgm'): hist = []
    return out, npad

HEADER = open('cdna_kernels/' + NAME + '.s.ref').read().split('; Override launch')[0]
def wrap(body, grid, block, lds, vgpr, sgpr=102):
    accum = (vgpr + 3) // 4 * 4
    return HEADER + f"""; Override launch geometry by editing the next line (default: block=256,
; grid=ceil(out_elems/256), lds=0). Harness parses it; keep it on one line.
; @launch grid=({grid},1,1) block=({block},1,1) lds={lds}
.amdgcn_target "amdgcn-amd-amdhsa--gfx950"
.text
.globl {NAME}_kernel
.p2align 12
.type {NAME}_kernel,@function
{NAME}_kernel:
{body}
.section .rodata,"a"
.p2align 6
.amdhsa_kernel {NAME}_kernel
  .amdhsa_next_free_vgpr {vgpr}
  .amdhsa_next_free_sgpr {sgpr}
  .amdhsa_accum_offset {accum}
  .amdhsa_group_segment_fixed_size 0
  .amdhsa_kernarg_size 104
  .amdhsa_user_sgpr_count 2
  .amdhsa_user_sgpr_kernarg_segment_ptr 1
  .amdhsa_system_sgpr_workgroup_id_x 1
  .amdhsa_float_denorm_mode_32 3
.end_amdhsa_kernel
"""

import subprocess, os
def sizes(lines):
    src = '.amdgcn_target "amdgcn-amd-amdhsa--gfx950"\n.text\n' + '\n'.join(f'ZL{i}:\n{l}' for i, l in enumerate(lines)) + f'\nZL{len(lines)}:\n'
    open('_sz.s', 'w').write(src)
    r = subprocess.run(['clang', '-x', 'assembler', '-target', 'amdgcn-amd-amdhsa', '-mcpu=gfx950', '-c', '_sz.s', '-o', '_sz.o'], capture_output=True, text=True)
    assert r.returncode == 0, r.stderr
    out = subprocess.run(['llvm-objdump', '-t', '_sz.o'], capture_output=True, text=True).stdout
    ad = {}
    for ln in out.splitlines():
        p = ln.split()
        if len(p) >= 3 and p[-1].startswith('ZL'): ad[int(p[-1][2:])] = int(p[0], 16)
    return [ad[i] for i in range(len(lines) + 1)]

def add_pads(lines, step=768, first=832, nw=8, wreg='s35', slack=192):
    wi = [i for i, l in enumerate(lines) if l.strip() == ';@WARM']
    assert len(wi) == 1
    wi = wi[0]
    disp_bytes = 8 * nw + 16
    ad = sizes(lines)
    end = ad[-1]
    ok = []; cur = True
    for l in lines:
        if l.strip() == ';@NOPAD': cur = False
        ok.append(cur)
        if l.strip() == ';@PADOK': cur = True
    pos = []; nxt = first - disp_bytes
    while nxt < end - 64:
        best = None
        for i in range(len(lines)):
            if i <= wi + 1: continue
            if ad[i] > nxt - 4 * len(pos): break
            if not ok[i]: continue
            prev = lines[i - 1].split(';')[0].split()
            dead = bool(prev) and prev[0] in ('s_branch', 's_endpgm')
            nop = lines[i].strip().startswith(';@NOPAD')
            if dead and ad[i] >= nxt - 4 * len(pos) - slack: best = (i, True)
            elif not (best and best[1]): best = (i, False)
        pos.append(best[0]); nxt = ad[best[0]] + 4 * (len(pos) - 1) + step
    out = []
    n = len(pos)
    for i, l in enumerate(lines):
        if i in pos:
            k = pos.index(i)
            out.append(f'PAD{k}:'); out.append(f'  s_cbranch_execz ' + (f'PAD{k+nw}' if k + nw < n else 'WBACK'))
        if i == wi:
            out.append('  s_mov_b64 exec, 0')
            for k in range(min(nw, n)):
                out.append(f'  s_cmp_eq_u32 {wreg}, {k}'); out.append(f'  s_cbranch_scc1 PAD{k}')
            out.append('WBACK:'); out.append('  s_mov_b64 exec, -1')
        else: out.append(l)
    return out, [ad[p] for p in pos], end
```

```python
import sys
from asmlib import *

H1C, H2LO, H2O, H3O, H4O, H1O = 0x1000, 0x30000, 0x40000, 0x60000, 0x70000, 0x200000
COPYB = 0x100000
QP, QF, MX, RED, ST, HB, DUM, WB = 0, 4352, 4608, 5120, 7168, 7424, 8448, 16384
LDS = WB + 65536
TAGC = 0x9E3779B1
LOG2E = 0x3FB8AA3B
SCALE = 0x3DB504F3
EPS = 0x3727C5AC

def gen(stamps=0, maxtry=1 << 16, dual=24, cpf=1, warm=7, kpre=0, qpos=2, qsleep=2, ptouch=1, pdirty=1, w2pf=1, kbar=1, forcefb=0, osleep=0, hdel=0, fdel=0, nq=2, vpre=1, late=0):
    L = []
    e = L.append
    D = 'row_mask:0xf bank_mask:0xf'
    SV = 22
    def stamp(k):
        if stamps:
            e('s_memrealtime s[96:97]'); e('s_waitcnt lgkmcnt(0)'); e(f'v_writelane_b32 v{SV}, s96, {k}')
    def wave_sum(v, sdst, op='add'):
        for r in (8, 4, 2, 1): e(f'v_{op}_f32_dpp v{v}, v{v}, v{v} row_ror:{r} {D}')
        e(f'v_{op}_f32_dpp v{v}, v{v}, v{v} row_bcast:15 row_mask:0xa bank_mask:0xf')
        e(f'v_{op}_f32_dpp v{v}, v{v}, v{v} row_bcast:31 row_mask:0xc bank_mask:0xf')
        e(f'v_readlane_b32 s{sdst}, v{v}, 63')
    def rbf(d, s): e(f'v_cvt_pk_bf16_f32 v{d}, 0, v{s}')
    def reduce8(rd, st=512):
        for k in range(4): e(f'ds_read_b128 v[{48+4*k}:{51+4*k}], v{rd} offset:{QP+st*k}')
    def reduce8b():
        e('s_waitcnt lgkmcnt(2)')
        e('v_pk_add_f32 v[48:49], v[48:49], v[52:53]'); e('v_pk_add_f32 v[50:51], v[50:51], v[54:55]')
        e('s_waitcnt lgkmcnt(0)')
        e('v_pk_add_f32 v[56:57], v[56:57], v[60:61]'); e('v_pk_add_f32 v[58:59], v[58:59], v[62:63]')
        e('v_pk_add_f32 v[48:49], v[48:49], v[56:57]'); e('v_pk_add_f32 v[50:51], v[50:51], v[58:59]')
        for k in range(4): e(f'v_add_f32_dpp v{48+k}, v{48+k}, v{48+k} quad_perm:[1,0,3,2] {D}')
    KB, VB, BB = 96, 64, 96
    def ld(reg, base, first):
        if not first: e('v_add_u32 v12, 0x2000, v12')
        e(f'global_load_dwordx4 v[{reg}:{reg+3}], v12, {base} nt')
    def dma(q):
        e(f's_xor_b32 m0, s62, {q << 10}' if q else 's_mov_b32 m0, s62')
        e(f'global_load_lds_dwordx4 v{16+q}, s[20:21] nt')
    pads = {1: [], 2: [], 4: []}
    def P(site):
        if warm & site:
            nm = f'PAD{site}_{len(pads[site])}'; pads[site].append(nm)
            e(nm + ':'); e(f's_cbranch_execz WB{site}')
    def W(site):
        if warm & site: e(f';@W{site}')
    def qtry():
        e('s_load_dwordx16 s[64:79], s[58:59], 0')
        e('s_load_dwordx16 s[80:95], s[58:59], 4096')
        e('s_add_u32 s58, s58, 256'); e('s_addc_u32 s59, s59, 0')

    e('s_cmp_ge_u32 s2, 256')
    e('s_cbranch_scc1 END')
    e('s_load_dwordx16 s[8:23], s[0:1], 0')
    e('s_load_dwordx2 s[32:33], s[0:1], 96')
    e('s_load_dwordx8 s[24:31], s[0:1], 64')
    if stamps: e('s_memrealtime s[96:97]'); e(f'v_mov_b32 v{SV}, 0')
    e('s_lshr_b32 s39, s2, 3')
    e('s_and_b32 s40, s39, 3')
    if cpf:
        e('s_getpc_b64 s[54:55]')
        e('s_lshl_b32 s41, s40, 7')
        e('s_add_u32 s54, s54, s41'); e('s_addc_u32 s55, s55, 0')
        e('v_lshlrev_b32 v10, 9, v0')
        e('v_mov_b32 v11, s55')
        e('v_add_co_u32 v10, vcc, s54, v10'); e('v_addc_co_u32 v11, vcc, 0, v11, vcc')
        e('v_cmp_gt_u32 vcc, 18, v0')
        e('s_and_saveexec_b64 s[56:57], vcc')
        e('s_cbranch_execz NOPF')
        e('global_load_dword v30, v[10:11], off')
        e('NOPF:')
        e('s_mov_b64 exec, -1')
    e('v_lshrrev_b32 v8, 6, v0')
    e('v_and_b32 v1, 63, v0')
    e('v_readfirstlane_b32 s35, v8')
    e('s_and_b32 s38, s2, 7')
    e('s_lshl_b32 s36, s38, 2')
    e('s_add_u32 s36, s36, s40')
    e('s_lshr_b32 s37, s39, 2')
    e('v_lshlrev_b32 v9, 4, v1')
    e('s_mul_i32 s41, s37, 3'); e('s_cmp_eq_u32 s37, 7'); e('s_cselect_b32 s41, 25, s41')
    e('s_lshl_b32 s41, s41, 3'); e('s_add_u32 s41, s41, s35'); e('s_lshl_b32 s41, s41, 10')
    e('s_lshl_b32 s42, s36, 20'); e('s_add_u32 s41, s41, s42'); e('s_add_u32 s41, s41, 0xC0000')
    e('v_add_u32 v13, s41, v9')
    e('v_mov_b32 v12, v13')
    e('v_lshrrev_b32 v2, 4, v1')
    e('v_and_b32 v3, 15, v1')
    e('s_cmp_lt_u32 s37, 4')
    e('s_cbranch_scc0 F_NQ')
    e('s_lshr_b32 s40, s37, 1'); e('s_lshl_b32 s40, s40, 3'); e('s_add_u32 s40, s40, s35'); e('s_lshl_b32 s40, s40, 5')
    e('v_lshrrev_b32 v10, 3, v1'); e('v_lshl_add_u32 v10, v10, 2, s40')
    e('s_lshl_b32 s41, s36, 1'); e('s_and_b32 s42, s37, 1'); e('s_add_u32 s41, s41, s42'); e('s_lshl_b32 s41, s41, 7')
    e('v_and_b32 v11, 0x70, v9'); e('v_lshl_add_u32 v11, v10, 13, v11'); e('v_add_u32 v11, s41, v11')
    e('v_lshlrev_b32 v10, 1, v10')
    e('s_waitcnt lgkmcnt(0)')
    e('global_load_dwordx4 v[16:19], v9, s[8:9]')
    e('global_load_dwordx2 v[20:21], v10, s[8:9]')
    for t in range(4):
        if t: e('v_add_u32 v11, 0x2000, v11')
        e(f'global_load_dwordx4 v[{64+4*t}:{67+4*t}], v11, s[14:15] nt')
    e('s_load_dword s34, s[32:33], 0')
    e('s_lshl_b32 s40, s36, 2'); e('s_add_u32 s40, s40, s37'); e('s_lshl_b32 s54, s40, 11'); e(f's_add_u32 s54, s54, 0x{H1O:x}')
    e('s_lshl_b32 s55, s40, 8'); e(f's_add_u32 s55, s55, 0x{H1C:x}')
    if ptouch:
        e('v_lshlrev_b32 v10, 7, v3'); e('v_add_u32 v10, s54, v10')
        e('s_cmp_lg_u32 s35, 0'); e('s_cbranch_scc1 NOTOUCH')
        e('global_load_dword v29, v10, s[32:33]')
        e('NOTOUCH:')
    if kpre:
        e('s_barrier')
        for t in range(kpre): ld(KB + 16 + 4 * t, 's[10:11]', t == 0)
    e('s_branch F_C')
    e('F_NQ:')
    e('s_waitcnt lgkmcnt(0)')
    if late:
        e('s_load_dword s34, s[32:33], 0'); e('s_waitcnt lgkmcnt(0)')
    for t in range(3): ld(KB + 16 + 4 * t, 's[10:11]', t == 0)
    if not late: e('s_load_dword s34, s[32:33], 0')
    e('s_cmp_lt_u32 s37, 6')
    e('s_cbranch_scc1 F_C')
    for t in range(4): ld(KB + 4 * t, 's[10:11]', False)
    e('F_C:')
    if stamps: e(f'v_writelane_b32 v{SV}, s96, 0')
    e('s_mov_b32 s48, 0xffff0000'); e(f's_mov_b32 s50, {maxtry}')
    e('v_and_b32 v14, 1, v1'); e('v_lshlrev_b32 v14, 4, v14'); e('v_mov_b32 v15, 0xffff'); e('v_lshlrev_b32 v14, v14, v15')
    e('v_bfe_u32 v15, v1, 1, 2')
    for d in range(4):
        e(f'v_cmp_eq_u32 vcc, {d}, v15'); e(f'v_cndmask_b32 v{4+d}, 0, v14, vcc')
    e('v_and_b32 v14, 1, v2'); e('v_lshlrev_b32 v14, 4, v14'); e('v_lshl_add_u32 v14, v3, 5, v14')
    e('v_mov_b32 v8, 0xff')
    e('s_cmp_lt_u32 s37, 4')
    e('s_cbranch_scc0 F_D')
    nk0 = kpre
    e(f's_waitcnt vmcnt({5+nk0})')
    for k in range(4):
        e(f'v_lshlrev_b32 v{48+2*k}, 16, v{16+k}'); e(f'v_and_b32 v{49+2*k}, s48, v{16+k}')
    e('v_pk_add_f32 v[56:57], v[48:49], v[50:51]'); e('v_pk_add_f32 v[58:59], v[52:53], v[54:55]')
    e('v_pk_add_f32 v[56:57], v[56:57], v[58:59]'); e('v_add_f32 v56, v56, v57')
    wave_sum(56, 40)
    e('v_mov_b32 v60, 0x3b000000')
    e('v_mul_f32 v62, s40, v60')
    for k in range(0, 8, 2): e(f'v_pk_add_f32 v[{48+k}:{49+k}], v[{48+k}:{49+k}], v[62:63] op_sel_hi:[1,0] neg_lo:[0,1] neg_hi:[0,1]')
    e('v_pk_mul_f32 v[56:57], v[48:49], v[48:49]')
    for k in range(2, 8, 2): e(f'v_pk_fma_f32 v[56:57], v[{48+k}:{49+k}], v[{48+k}:{49+k}], v[56:57]')
    e('v_add_f32 v56, v56, v57')
    wave_sum(56, 40)
    rbf(57, 62)
    e('v_mul_f32 v58, s40, v60'); rbf(58, 58)
    e(f'v_add_f32 v58, 0x{EPS:x}, v58'); rbf(58, 58)
    e('v_sqrt_f32 v58, v58'); rbf(58, 58)
    e('v_rcp_f32 v58, v58')
    e(f's_waitcnt vmcnt({4+nk0})')
    e('v_lshlrev_b32 v48, 16, v20'); e('v_and_b32 v49, s48, v20'); e('v_lshlrev_b32 v50, 16, v21'); e('v_and_b32 v51, s48, v21')
    for k in range(4): e(f'v_sub_f32 v{48+k}, v{48+k}, v57')
    for k in range(4): rbf(48 + k, 48 + k)
    for k in range(4): e(f'v_mul_f32 v{48+k}, v{48+k}, v58')
    for k in range(4): e(f'v_cvt_pk_bf16_f32 v{48+k}, v{48+k}, v{48+k}')
    for t in range(4):
        for d in range(4): e(f'v_and_b32 v{32+4*t+d}, v{48+t}, v{4+d}')
    e('s_lshl_b32 s40, s35, 9'); e('s_lshr_b32 s41, s35, 1'); e('s_lshl_b32 s41, s41, 6'); e('s_add_u32 s40, s40, s41'); e('v_add_u32 v10, s40, v14')
    e('v_and_b32 v11, 3, v1'); e('v_lshrrev_b32 v16, 2, v1'); e('v_lshlrev_b32 v16, 4, v16')
    e('v_lshl_add_u32 v17, v11, 8, v16'); e('v_add_u32 v17, s54, v17'); e('v_add_u32 v18, s55, v16')
    e('v_mul_u32_u24 v11, 0x440, v11'); e('v_add_u32 v11, v11, v16')
    e('s_mov_b32 s40, 0x00ff00ff'); e('s_mov_b32 s41, 0xff00ff00')
    for t in range(4):
        e(f's_waitcnt vmcnt({3-t+nk0})')
        e(f'v_mfma_f32_16x16x32_bf16 v[48:51], v[{32+4*t}:{35+4*t}], v[{64+4*t}:{67+4*t}], ' + ('0' if t == 0 else 'v[48:51]'))
    e('s_mov_b64 exec, s[40:41]')
    e(f'ds_write_b128 v10, v[48:51] offset:{QP}')
    e('s_mov_b64 exec, -1')
    e('s_waitcnt lgkmcnt(0)')
    stamp(1)
    e('s_cmp_lg_u32 s35, 7')
    e('s_barrier')
    e('s_cbranch_scc1 L_A')
    reduce8(11, 256)
    e(f's_add_u32 s42, s34, 0x{TAGC:x}')
    e('s_and_b32 s44, s42, 0xff'); e('s_bfe_u32 s45, s42, 0x80008'); e('s_bfe_u32 s46, s42, 0x80010'); e('s_lshr_b32 s47, s42, 24')
    e('s_mov_b32 s40, 0x11111111'); e('s_mov_b32 s41, s40')
    reduce8b()
    for k in range(4): e(f'v_add_f32_dpp v{48+k}, v{48+k}, v{48+k} quad_perm:[2,3,0,1] {D}')
    for k in range(4): e(f'v_bfi_b32 v{48+k}, v8, s{44+k}, v{48+k}')
    e('global_store_dwordx4 v17, v[48:51], s[32:33]')
    e('global_store_dwordx4 v17, v[48:51], s[32:33] offset:1024')
    e('s_mov_b64 exec, s[40:41]')
    e('global_store_dwordx4 v18, v[48:51], s[32:33] sc1')
    e('s_mov_b64 exec, -1')
    stamp(4)
    e('L_A:')
    e('s_barrier')
    for t in range(kpre, 3): ld(KB + 16 + 4 * t, 's[10:11]', t == 0)
    e('F_D:')
    stamp(14)
    e('s_lshl_b32 s40, s35, 9'); e('s_lshr_b32 s41, s35, 2'); e('s_lshl_b32 s42, s41, 7'); e('s_add_u32 s40, s40, s42'); e('v_add_u32 v14, s40, v14')
    e('v_lshrrev_b32 v10, 1, v1'); e('v_lshlrev_b32 v10, 4, v10')
    e('v_and_b32 v15, 1, v1'); e('v_mul_u32_u24 v15, 0x880, v15'); e('v_add_u32 v15, v15, v10')
    e('s_lshl_b32 s40, s36, 3'); e('s_add_u32 s40, s40, s37'); e('s_lshl_b32 s52, s40, 9')
    e('s_lshl_b32 s40, s36, 13'); e('s_lshl_b32 s41, s41, 11'); e('s_add_u32 s40, s40, s41'); e('s_and_b32 s41, s35, 3'); e('s_lshl_b32 s41, s41, 6')
    e('s_add_u32 s40, s40, s41'); e(f's_add_u32 s40, s40, 0x{H1O:x}'); e('s_add_u32 s58, s32, s40'); e('s_addc_u32 s59, s33, 0')
    e('v_lshlrev_b32 v20, 4, v3')
    e('s_lshl_b32 s40, s35, 3'); e('v_mov_b32 v21, s40')
    e('v_mov_b32 v12, v13')
    for k in range(4): e(f'v_mov_b32 v{44+k}, 0')
    W(1)
    e('s_waitcnt lgkmcnt(0)')
    e(f's_add_u32 s34, s34, 0x{TAGC:x}')
    e('s_and_b32 s44, s34, 0xff'); e('s_bfe_u32 s45, s34, 0x80008'); e('s_bfe_u32 s46, s34, 0x80010'); e('s_lshr_b32 s47, s34, 24')
    if pdirty:
        e('s_cmp_lg_u32 s35, 7'); e('s_cbranch_scc1 NOPD')
        e('s_not_b32 s40, s34')
        for k in range(4): e(f'v_mov_b32 v{48+k}, s40')
        e(f's_add_u32 s42, s52, 0x{H2O:x}'); e('v_add_u32 v10, s42, v9')
        e('s_lshr_b32 s42, s52, 5'); e(f's_add_u32 s42, s42, 0x{H2LO:x}'); e('v_mov_b32 v11, s42')
        e('v_cmp_gt_u32 vcc, 32, v1'); e('v_cndmask_b32 v10, v11, v10, vcc')
        e('s_mov_b32 exec_hi, 1')
        e('global_store_dwordx4 v10, v[48:51], s[32:33]')
        e('s_mov_b64 exec, -1')
        e('NOPD:')
    e(f's_mov_b32 s49, {0 if forcefb else 7}')
    e('s_cmp_lt_u32 s37, 4')
    if kbar: e('s_barrier')
    e('s_cbranch_scc0 V_NQ')
    def vq(a, b):
        for t in range(a, b): ld(VB + 16 + 4 * t, 's[12:13]', t == 0)
    qtry()
    vq(0, vpre if nq else 3)
    e(f's_mov_b32 s51, {nq}')
    e('s_branch FETCH')
    e('V_NQ:')
    vq(0, 3)
    e('s_mov_b32 s51, 0')
    e('s_cmp_lt_u32 s37, 6')
    e('s_cbranch_scc0 V_A')
    e('s_lshl_b32 s62, s35, 13'); e(f's_add_u32 s62, s62, {WB}')
    e('s_lshr_b32 s40, s35, 2'); e('s_and_b32 s41, s35, 3')
    e('s_lshl_b32 s42, s38, 19'); e('s_lshl_b32 s43, s40, 18'); e('s_add_u32 s42, s42, s43')
    e('s_lshl_b32 s43, s41, 15'); e('s_add_u32 s42, s42, s43'); e('s_and_b32 s43, s39, 7'); e('s_lshl_b32 s43, s43, 7'); e('s_add_u32 s42, s42, s43')
    e('v_lshrrev_b32 v16, 3, v1'); e('v_and_b32 v17, 0x70, v9'); e('v_lshl_add_u32 v16, v16, 10, v17'); e('v_add_u32 v16, s42, v16')
    for t in range(8):
        if t == 8 - qpos: qtry()
        g, hb = t & 3, t >> 2
        e(f's_add_u32 m0, s62, {t << 10}')
        if t: e(f'v_xor_b32 v17, 0x{g*32 | g*8192 | hb << 17:x}, v16')
        e(f'global_load_lds_dwordx4 v{17 if t else 16}, s[16:17] nt')
    if qpos == 0: qtry()
    e('s_branch FETCH')
    e('V_A:')
    for t in range(4):
        if t == 4 - qpos: qtry()
        ld(VB + 4 * t, 's[12:13]', False)
    if qpos == 0: qtry()
    e('FETCH:')
    stamp(15)
    e('s_lshl_b32 s42, s35, 5'); e('v_mov_b32 v11, s42')
    e('FCHK:')
    e('s_waitcnt lgkmcnt(0)')
    for k in range(16): e(f's_xor_b64 s[{64+2*k}:{65+2*k}], s[{64+2*k}:{65+2*k}], s[{44+2*(k&1)}:{45+2*(k&1)}]')
    e('s_or_b64 s[40:41], s[64:65], s[66:67]')
    for k in range(2, 16): e(f's_or_b64 s[40:41], s[40:41], s[{64+2*k}:{65+2*k}]')
    e('s_or_b32 s40, s40, s41'); e('s_and_b32 s40, s40, 0xff')
    if forcefb: e('s_cmp_eq_u32 s49, 0')
    e('s_cbranch_scc0 FOKQ')
    e('s_sub_u32 s49, s49, 1')
    e('s_cbranch_scc1 QFB')
    if qsleep: e(f's_sleep {qsleep}')
    qtry()
    if nq:
        e('s_sub_u32 s51, s51, 1'); e('s_cselect_b32 s51, 0, s51'); e('s_cbranch_scc1 FCHK')
        e('s_cmp_eq_u32 s51, 0'); e('s_cbranch_scc0 FCHK')
        vq(vpre, 3)
    e('s_branch FCHK')
    P(1)
    e('FOKQ:')
    for k in range(8): e(f'v_mov_b64 v[{48+2*k}:{49+2*k}], s[{64+2*k}:{65+2*k}]')
    for k in range(8): e(f'v_pk_add_f32 v[{48+2*k}:{49+2*k}], s[{80+2*k}:{81+2*k}], v[{48+2*k}:{49+2*k}]')
    for k in range(8): e(f'v_cvt_pk_bf16_f32 v{48+k}, v{48+2*k}, v{49+2*k}')
    e('s_mov_b64 exec, 1')
    e(f'ds_write_b128 v11, v[48:51] offset:{QF}'); e(f'ds_write_b128 v11, v[52:55] offset:{QF+16}')
    e('s_mov_b64 exec, -1')
    if nq:
        e('s_cmp_eq_u32 s51, 0'); e('s_cbranch_scc1 QDONE')
        vq(vpre, 3)
    e('QDONE:')
    if stamps:
        e(f'v_readlane_b32 s40, v{SV}, 0'); e('s_add_u32 s41, s49, 1'); e('s_mul_i32 s41, s41, 100'); e('s_add_u32 s40, s40, s41'); e(f'v_writelane_b32 v{SV}, s40, 2')
    e(f'v_mov_b32 v63, 0x{LOG2E:x}')
    e('v_mov_b32 v52, 0xff800000'); e('v_mov_b32 v61, 0xff800000')
    e('s_cmp_lt_u32 s37, 4')
    e('s_waitcnt lgkmcnt(0)')
    stamp(3)
    e('s_barrier')
    e(f'ds_read_b128 v[48:51], v20 offset:{QF}')
    e('s_cbranch_scc0 QSK')
    e('s_waitcnt vmcnt(3)')
    e('QSK:')
    e('s_waitcnt vmcnt(11) lgkmcnt(0)')
    def dots(r, kb, n):
        for k in range(4):
            for t in range(n): e(f'v_dot2_f32_bf16 v{r+t}, v{kb+4*t+k}, v{48+k}, ' + ('0' if k == 0 else f'v{r+t}'))
        e(f'v_add_f32_dpp v{r}, v{r}, v{r} row_ror:8 row_mask:0xf bank_mask:0x3')
        e(f'v_add_f32_dpp v{r+1}, v{r+1}, v{r+1} row_ror:8 row_mask:0xf bank_mask:0x3')
        e(f'v_add_f32_dpp v{r}, v{r+2}, v{r+2} row_ror:8 row_mask:0xf bank_mask:0xc')
        e(f'v_add_f32_dpp v{r+1}, v{r+3}, v{r+3} row_ror:8 row_mask:0xf bank_mask:0xc')
        e(f'v_add_f32_dpp v{r}, v{r}, v{r} row_shl:4 row_mask:0xf bank_mask:0x5')
        e(f'v_add_f32_dpp v{r}, v{r+1}, v{r+1} row_shr:4 row_mask:0xf bank_mask:0xa')
        e(f'v_add_f32_dpp v{r}, v{r}, v{r} quad_perm:[1,0,3,2] {D}')
        e(f'v_add_f32_dpp v{r}, v{r}, v{r} quad_perm:[2,3,0,1] {D}')
    e('s_cmp_lt_u32 s37, 6')
    dots(58, KB + 16, 3)
    e('s_cbranch_scc1 SMX')
    e('s_waitcnt vmcnt(7)')
    dots(52, KB, 4)
    e('SMX:')
    P(1)
    rbf(52, 52); rbf(58, 58); e(f'v_mul_f32 v52, 0x{SCALE:x}, v52'); e(f'v_mul_f32 v58, 0x{SCALE:x}, v58'); rbf(52, 52); rbf(58, 58)
    e('v_max_f32 v54, v52, v58')
    e(f'v_max_f32_dpp v54, v54, v54 row_ror:8 {D}'); e(f'v_max_f32_dpp v54, v54, v54 row_ror:4 {D}')
    e('v_mov_b32 v53, v54'); e('v_permlane32_swap_b32 v53, v54'); e('v_max_f32 v54, v53, v54')
    e('v_mov_b32 v53, v54'); e('v_permlane16_swap_b32 v53, v54'); e('v_max_f32 v54, v53, v54')
    e('v_sub_f32 v52, v52, v54'); e('v_sub_f32 v58, v58, v54'); e('v_mul_f32 v52, v52, v63'); e('v_mul_f32 v58, v58, v63')
    e('v_exp_f32 v52, v52'); e('v_exp_f32 v58, v58')
    e('v_cvt_pk_bf16_f32 v56, v52, v52'); e('v_cvt_pk_bf16_f32 v57, v58, v58')
    e('v_add_f32 v55, v58, v52')
    def amask(t):
        s, b = (56, 4 * t) if t < 4 else (57, 4 * (t - 4))
        for d in range(4): e(f'v_and_b32_dpp v{KB+4*t+d}, v{s}, v{4+d} row_newbcast:{b} {D}')
    amask(4)
    e(f'v_add_f32_dpp v55, v55, v55 row_ror:8 {D}')
    amask(5)
    e(f'v_add_f32_dpp v55, v55, v55 row_ror:4 {D}')
    e('v_mov_b32 v53, v55')
    amask(6)
    e('v_permlane32_swap_b32 v53, v55'); e('v_add_f32 v55, v53, v55'); e('v_mov_b32 v53, v55')
    e('v_and_b32 v31, 7, v1'); e('v_lshlrev_b32 v31, 3, v31')
    e('v_permlane16_swap_b32 v53, v55'); e('v_add_f32 v55, v53, v55')
    e('s_mov_b64 exec, 1'); e(f'ds_write_b64 v21, v[54:55] offset:{MX}'); e('s_mov_b64 exec, -1')
    e('s_cbranch_scc1 NOAM')
    for t in range(4): amask(t)
    e('NOAM:')
    P(1)
    e('s_waitcnt lgkmcnt(0)')
    stamp(5)
    e('s_barrier')
    e(f'ds_read_b64 v[48:49], v31 offset:{MX}')
    e('s_lshr_b32 s42, s52, 5'); e(f's_add_u32 s42, s42, 0x{H2LO:x}')
    e('v_mov_b32 v62, s42'); e('v_mov_b32 v60, s34'); e('v_mov_b32 v61, s34'); e(f'v_add_u32 v57, 0x{COPYB:x}, v62')
    e('s_cmp_eq_u32 s35, 0'); e('s_cselect_b64 s[40:41], 1, 0')
    e('s_waitcnt lgkmcnt(0)')
    e(f'v_max_f32_dpp v58, v48, v48 quad_perm:[1,0,3,2] {D}')
    e(f'v_max_f32_dpp v58, v58, v58 quad_perm:[2,3,0,1] {D}')
    e(f'v_max_f32_dpp v58, v58, v58 row_half_mirror {D}')
    e('v_sub_f32 v48, v48, v58'); e('v_sub_f32 v54, v54, v58')
    e('v_mul_f32 v48, v48, v63'); e('v_mul_f32 v54, v54, v63')
    e('v_exp_f32 v48, v48'); e('v_exp_f32 v54, v54')
    e('v_mul_f32 v59, v48, v49')
    e(f'v_add_f32_dpp v59, v59, v59 quad_perm:[1,0,3,2] {D}')
    e(f'v_add_f32_dpp v59, v59, v59 quad_perm:[2,3,0,1] {D}')
    e(f'v_add_f32_dpp v59, v59, v59 row_half_mirror {D}')
    e('s_mov_b64 exec, s[40:41]')
    nls = 2
    e('global_store_dwordx4 v62, v[58:61], s[32:33]')
    e('global_store_dwordx4 v57, v[58:61], s[32:33] sc1')
    e('s_mov_b64 exec, -1')
    stamp(6)
    e('v_lshlrev_b32 v10, 7, v2'); e('v_bfe_u32 v11, v1, 1, 1'); e('v_lshl_add_u32 v10, v11, 6, v10')
    e('v_bfe_u32 v11, v1, 2, 2'); e('v_lshl_add_u32 v10, v11, 4, v10')
    e(f's_add_u32 s42, s52, 0x{H2O:x}'); e('v_add_u32 v10, s42, v10')
    for k in (36, 37, 40, 41): e(f'v_mov_b32 v{k}, s34')
    e('s_mov_b32 s40, 0x11111111'); e('s_mov_b32 s41, s40'); e('s_mov_b32 s42, 0x44444444'); e('s_mov_b32 s43, s42')
    def pv(t): e(f'v_mfma_f32_16x16x32_bf16 v[44:47], v[{KB+4*t}:{KB+3+4*t}], v[{VB+4*t}:{VB+3+4*t}], v[44:47]')
    e('s_cmp_lt_u32 s37, 4')
    e('s_cbranch_scc1 LQ2')
    e('s_cmp_lt_u32 s37, 6')
    e('s_cbranch_scc0 LA2')
    e(f's_waitcnt vmcnt({8+nls})')
    pv(4); pv(5); pv(6)
    e('s_nop 7')
    e('s_branch PVD')
    P(1)
    e('LA2:')
    for k, t in enumerate((4, 5, 6, 0, 1, 2, 3)):
        e(f's_waitcnt vmcnt({6-k+nls})'); pv(t)
    e('s_nop 6')
    e('s_branch PVD')
    e('LQ2:')
    for t in range(3):
        e(f's_waitcnt vmcnt({2-t+nls})'); pv(4 + t)
    e('PVD:')
    e('s_mov_b64 exec, 0xffffffff')
    e('v_pk_mul_f32 v[44:45], v[44:45], v[54:55] op_sel_hi:[1,0]'); e('v_pk_mul_f32 v[46:47], v[46:47], v[54:55] op_sel_hi:[1,0]')
    e(f'ds_write_b128 v14, v[44:47] offset:{QP}')
    e('s_mov_b64 exec, -1')
    e('s_cmp_lg_u32 s35, 7')
    e('s_waitcnt lgkmcnt(0)')
    stamp(7)
    e('s_barrier')
    e('s_cbranch_scc1 L_B5')
    reduce8(15)
    reduce8b()
    e('v_cvt_pk_bf16_f32 v38, v48, v49'); e('v_cvt_pk_bf16_f32 v39, v50, v51')
    e('s_mov_b64 exec, s[40:41]')
    e('global_store_dwordx4 v10, v[36:39], s[32:33]')
    e('s_mov_b64 exec, s[42:43]')
    e('global_store_dwordx4 v10, v[38:41], s[32:33]')
    e('s_mov_b64 exec, -1')
    e(f'v_add_u32 v11, 0x{COPYB:x}, v10')
    e('s_mov_b64 exec, s[40:41]')
    e('global_store_dwordx4 v11, v[36:39], s[32:33] sc1')
    e('s_mov_b64 exec, s[42:43]')
    e('global_store_dwordx4 v11, v[38:41], s[32:33] sc1')
    e('s_mov_b64 exec, -1')
    stamp(8)
    e('L_B5:')
    e('s_lshr_b32 s40, s37, 1')
    e('s_cmp_eq_u32 s40, 2')
    e('s_barrier')
    e('s_cbranch_scc0 NOTOP')

    e('s_lshr_b32 s40, s35, 2'); e('s_and_b32 s41, s35, 3')
    e('v_and_b32 v26, 1, v2'); e('v_lshlrev_b32 v24, 2, v26'); e('v_and_b32 v25, 7, v3'); e('v_xor_b32 v24, v24, v25')
    e('v_lshrrev_b32 v27, 1, v2'); e('v_lshl_add_u32 v24, v27, 3, v24'); e('v_lshlrev_b32 v24, 4, v24')
    e('s_lshl_b32 s42, s38, 1'); e('s_add_u32 s42, s42, s40')
    e('s_lshl_b32 s43, s42, 8'); e(f's_add_u32 s43, s43, 0x{H2LO:x}'); e('v_add_u32 v24, s43, v24')
    e('s_lshl_b32 s43, s42, 13'); e('s_lshl_b32 s42, s41, 7'); e('s_add_u32 s43, s43, s42'); e(f's_add_u32 s43, s43, 0x{H2O:x}')
    e('v_lshlrev_b32 v25, 9, v3'); e('v_lshl_add_u32 v25, v2, 4, v25'); e('v_add_u32 v25, s43, v25')
    e('v_lshl_add_u32 v27, v26, 1, v27'); e('v_lshl_add_u32 v27, v27, 4, v3'); e('v_lshlrev_b32 v27, 2, v27')
    e('s_lshl_b32 s42, s38, 11'); e('s_and_b32 s43, s39, 7'); e('s_lshl_b32 s43, s43, 8'); e('s_add_u32 s42, s42, s43'); e(f's_add_u32 s42, s42, 0x{H3O:x}')
    e('v_add_u32 v27, s42, v27')
    e('v_and_b32 v16, 3, v3'); e('v_lshlrev_b32 v16, 3, v16'); e('v_lshrrev_b32 v28, v16, s34')
    e('v_lshrrev_b32 v17, 2, v3'); e('v_lshl_add_u32 v16, v17, 7, v16'); e('v_mul_u32_u24 v17, 1056, v2'); e('v_add3_u32 v16, v16, v17, s62')
    for cg in range(1, 4): e(f'v_xor_b32 v{16+cg}, {32*cg}, v16')
    e('v_lshlrev_b32 v29, 2, v1'); e('s_lshl_b32 s42, s35, 8'); e('v_add_u32 v26, s42, v29')
    for r in range(8): e(f'v_mov_b32 v{56+r}, 0')
    e(f's_mov_b32 s49, {dual}')
    W(2)
    def opoll():
        e('global_load_dwordx4 v[48:51], v24, s[32:33] sc1')
        e('global_load_dwordx4 v[64:67], v25, s[32:33] sc1')
        e('global_load_dwordx4 v[68:71], v25, s[32:33] offset:64 sc1')
    opoll()
    e('s_waitcnt vmcnt(3)')
    for hb in range(2):
        for cg in range(4):
            b = BB + (hb * 4 + cg) * 4
            for a in range(2):
                e(f'ds_read_b64_tr_b16 v[{b+2*a}:{b+2*a+1}], v{16+cg} offset:{hb*4096+a*512}')
    stamp(9)
    e('s_branch OCHK')
    e('OPOLL:')
    e('s_sub_u32 s49, s49, 1')
    e('s_cmp_lg_u32 s49, 0')
    e('s_cbranch_scc1 OP2')
    e(f'v_add_u32 v24, 0x{COPYB:x}, v24'); e(f'v_add_u32 v25, 0x{COPYB:x}, v25')
    e('OP2:')
    if osleep: e(f's_sleep {osleep}')
    opoll()
    e('OCHK:')
    e('s_waitcnt vmcnt(0)')
    e('v_cmp_ne_u32 s[40:41], s34, v64'); e('v_cmp_ne_u32 s[42:43], s34, v71'); e('v_cmp_ne_u32 vcc, s34, v51')
    for k in range(4): e(f'v_mov_b32_dpp v{56+k}, v{66+k} quad_perm:[0,1,2,3] row_mask:0xf bank_mask:0x3')
    e('s_or_b64 s[40:41], s[40:41], s[42:43]'); e('s_or_b64 vcc, vcc, s[40:41]')
    e('s_cbranch_scc0 OOK')
    e('s_sub_u32 s50, s50, 1')
    e('s_cbranch_scc0 OPOLL')
    P(2)
    e('OOK:')
    stamp(10)
    def omf(hb, cg):
        b = BB + (hb * 4 + cg) * 4; d = 80 + cg * 4
        e(f'v_mfma_f32_16x16x32_bf16 v[{d}:{d+3}], v[{56+4*hb}:{59+4*hb}], v[{b}:{b+3}], ' + (f'v[{d}:{d+3}]' if hb else '0'))
    e('s_waitcnt lgkmcnt(0)')
    omf(0, 0)
    e(f'v_max_f32_dpp v52, v48, v48 quad_perm:[1,0,3,2] {D}')
    for k in range(2): e(f'v_mov_b32_dpp v{60+k}, v{66+k} quad_perm:[0,1,2,3] row_mask:0xf bank_mask:0xc')
    omf(0, 1)
    e(f'v_max_f32_dpp v52, v52, v52 quad_perm:[2,3,0,1] {D}')
    for k in range(2, 4): e(f'v_mov_b32_dpp v{60+k}, v{66+k} quad_perm:[0,1,2,3] row_mask:0xf bank_mask:0xc')
    omf(0, 2)
    e(f'v_max_f32_dpp v52, v52, v52 row_half_mirror {D}')
    e('v_sub_f32 v52, v48, v52')
    omf(0, 3)
    e(f'v_mul_f32 v52, 0x{LOG2E:x}, v52'); e('v_exp_f32 v52, v52')
    omf(1, 0)
    e('v_mul_f32 v53, v52, v49')
    omf(1, 1)
    e(f'v_mov_b32_dpp v72, v52 row_newbcast:0 {D}')
    e(f'v_add_f32_dpp v53, v53, v53 quad_perm:[1,0,3,2] {D}')
    omf(1, 2)
    e(f'v_mov_b32_dpp v73, v52 row_newbcast:1 {D}')
    e(f'v_add_f32_dpp v53, v53, v53 quad_perm:[2,3,0,1] {D}')
    omf(1, 3)
    e(f'v_mov_b32_dpp v74, v52 row_newbcast:2 {D}')
    e(f'v_add_f32_dpp v53, v53, v53 row_half_mirror {D}')
    e(f'v_mov_b32_dpp v75, v52 row_newbcast:3 {D}')
    e('v_rcp_f32 v53, v53')
    for cg in range(4):
        e(f'v_pk_mul_f32 v[{32+2*cg}:{33+2*cg}], v[{80+4*cg}:{81+4*cg}], v[72:73]')
        e(f'v_pk_fma_f32 v[{32+2*cg}:{33+2*cg}], v[{82+4*cg}:{83+4*cg}], v[74:75], v[{32+2*cg}:{33+2*cg}]')
        e(f'v_add_f32 v{40+cg}, v{32+2*cg}, v{33+2*cg}')
        if cg & 1: e(f'v_pk_mul_f32 v[{39+cg}:{40+cg}], v[{39+cg}:{40+cg}], v[52:53] op_sel:[0,1]')
        if cg == 2: e('v_permlane32_swap_b32 v40, v41'); e('v_add_f32 v40, v40, v41')
    e('s_cmp_lg_u32 s35, 0')
    e('v_permlane32_swap_b32 v42, v43')
    e('v_add_f32 v42, v42, v43')
    e('v_permlane16_swap_b32 v40, v42')
    e('v_add_f32 v40, v40, v42')
    e(f'ds_write_b32 v26, v40 offset:{RED}')
    e('s_waitcnt lgkmcnt(0)')
    stamp(11)
    e('s_barrier')
    e('s_cbranch_scc1 FIN')
    for k in range(4): e(f'ds_read2st64_b32 v[{48+2*k}:{49+2*k}], v29 offset0:{RED//256+2*k} offset1:{RED//256+2*k+1}')
    e('s_waitcnt lgkmcnt(2)')
    e('v_pk_add_f32 v[48:49], v[48:49], v[50:51]')
    e('s_waitcnt lgkmcnt(0)')
    e('v_pk_add_f32 v[52:53], v[52:53], v[54:55]')
    e('v_pk_add_f32 v[48:49], v[48:49], v[52:53]'); e('v_add_f32 v48, v48, v49')
    e('v_bfi_b32 v48, v8, v28, v48')
    e('global_store_dword v27, v48, s[32:33] sc1')
    stamp(12)
    e('FIN:')
    if stamps:
        e('s_cmp_eq_u32 s35, 0'); e('s_cselect_b32 s41, 0, 128'); e('s_cbranch_scc1 FL'); e('s_cmp_eq_u32 s35, 7'); e('s_cbranch_scc0 END')
        e('FL:'); e('s_mov_b64 exec, 0xffff')
        e('s_lshl_b32 s40, s2, 8'); e('s_add_u32 s40, s40, s41'); e('s_add_u32 s40, s40, 0x8000000'); e('v_lshlrev_b32 v24, 3, v1'); e('v_add_u32 v24, s40, v24')
        e(f'v_mov_b32 v{SV+1}, 0'); e(f'global_store_dwordx2 v24, v[{SV}:{SV+1}], s[32:33]')
    e('END:')
    e('s_endpgm')
    P(2)

    e('QFB:')
    e('s_lshl_b32 s40, s36, 10'); e('s_lshl_b32 s41, s35, 6'); e('s_add_u32 s40, s40, s41'); e(f's_add_u32 s40, s40, 0x{H1C:x}')
    e('v_lshlrev_b32 v10, 2, v3'); e('v_add_u32 v10, s40, v10')
    e('v_and_b32 v50, 3, v3'); e('v_lshlrev_b32 v50, 3, v50'); e('v_lshrrev_b32 v50, v50, s34'); e('v_and_b32 v50, 0xff, v50')
    e('v_lshl_add_u32 v11, v3, 1, v11')
    e('QFB1:')
    e('global_load_dword v48, v10, s[32:33] sc1')
    e('global_load_dword v49, v10, s[32:33] offset:512 sc1')
    e('s_waitcnt vmcnt(0)')
    e('v_xor_b32 v48, v48, v50'); e('v_xor_b32 v49, v49, v50'); e('v_or_b32 v51, v48, v49'); e('v_and_b32 v51, 0xff, v51')
    e('v_cmp_ne_u32 vcc, 0, v51')
    e('s_nop 4')
    e('s_cbranch_vccz QFB2')
    e('s_sub_u32 s50, s50, 1')
    e('s_cbranch_scc0 QFB1')
    e('QFB2:')
    e('v_add_f32 v48, v48, v49'); e('v_cvt_pk_bf16_f32 v48, v48, v48')
    e(f'ds_write_b16 v11, v48 offset:{QF}')
    e('s_branch QDONE')

    P(1)
    e('NOTOP:')
    e('s_min_u32 s40, s38, 3'); e('s_mul_i32 s41, s38, 5'); e('s_add_u32 s40, s40, s41')
    e('s_cmp_lt_u32 s37, 4')
    e('s_cbranch_scc0 NOTQ')
    if w2pf:
        e('s_cmp_lt_u32 s35, 4'); e('s_cbranch_scc1 PFW1')
        e('s_cmp_eq_u32 s35, 7'); e('s_cbranch_scc1 FIN')
        e('s_lshl_b32 s40, s40, 15'); e('s_mul_i32 s41, s39, 3'); e('s_add_u32 s41, s41, s35'); e('s_sub_u32 s41, s41, 4'); e('s_lshl_b32 s41, s41, 12'); e('s_add_u32 s40, s40, s41')
        e(f's_min_u32 s40, s40, {1376*1024-4096}')
        e('v_lshl_add_u32 v16, v1, 6, s40')
        e('global_load_dword v48, v16, s[24:25]')
        e('s_waitcnt vmcnt(0)')
        e('s_branch FIN')
        e('PFW1:')
        e('s_lshl_b32 s41, s39, 2'); e('s_add_u32 s41, s41, s35'); e('s_mul_i32 s41, s41, 8*2752'); e('s_lshl_b32 s40, s40, 6'); e('s_add_u32 s40, s40, s41')
        e('v_lshrrev_b32 v16, 3, v1'); e('v_mul_u32_u24 v16, 2752, v16'); e('v_and_b32 v17, 7, v1'); e('v_min_u32 v17, 5, v17'); e('v_lshl_add_u32 v16, v17, 6, v16')
        e('v_add_u32 v16, s40, v16'); e(f'v_min_u32 v16, {512*2752-4}, v16')
        e('global_load_dword v48, v16, s[20:21]')
        e('s_waitcnt vmcnt(0)')
    e('s_branch FIN')
    e('NOTQ:')
    e('s_cmp_lt_u32 s2, 235')
    e('s_cbranch_scc0 FIN')
    e('s_sub_u32 s41, s39, 24'); e('s_add_u32 s53, s40, s41')
    e('s_lshl_b32 s62, s35, 12'); e(f's_add_u32 s62, s62, {WB}')
    e('v_and_b32 v24, 3, v3'); e('v_lshrrev_b32 v16, 2, v1'); e('v_lshlrev_b32 v17, 4, v24')
    e('v_lshrrev_b32 v23, 2, v3'); e('v_lshlrev_b32 v23, 6, v23'); e('v_lshl_add_u32 v23, v2, 9, v23')
    e('v_lshl_add_u32 v23, v24, 3, v23'); e('v_add_u32 v23, s62, v23')
    e('s_and_b32 s54, s53, 1')
    e('s_mul_i32 s40, s35, 64*2752'); e('s_lshl_b32 s41, s53, 6'); e('s_add_u32 s40, s40, s41')
    e('s_movk_i32 s42, 2752')
    e('v_mad_u32_u24 v16, v16, s42, v17')
    e('s_mul_i32 s41, s54, 32*2752'); e('s_add_u32 s42, s40, s41'); e('s_sub_u32 s40, s40, s41'); e(f's_add_u32 s40, s40, {32*2752}')
    e('v_add_u32 v18, s40, v16'); e('v_add_u32 v16, s42, v16')
    e(f'v_add_u32 v17, {16*2752}, v16'); e(f'v_add_u32 v19, {16*2752}, v18')
    e('s_lshl_b32 s43, s54, 11'); e('s_add_u32 s62, s62, s43')
    for q in range(4): dma(q)
    e('v_lshrrev_b32 v24, 3, v1')
    e('v_and_b32 v25, 7, v1')
    e('v_lshlrev_b32 v26, 12, v24'); e('v_lshl_add_u32 v26, v25, 4, v26')
    e('s_lshl_b32 s40, s53, 15'); e('s_lshl_b32 s41, s35, 7'); e('s_add_u32 s40, s40, s41'); e('v_add_u32 v26, s40, v26')
    for t in range(4): e(f'global_load_dwordx4 v[{112+4*t}:{115+4*t}], v26, s[24:25] offset:{1024*t} nt')
    e('v_sub_u32 v27, 7, v25'); e('v_min_u32 v27, v27, v25'); e('v_lshl_add_u32 v27, v24, 2, v27')
    e('s_lshl_b32 s41, s53, 6'); e('v_lshl_add_u32 v28, v27, 1, s41')
    e('v_lshrrev_b32 v29, 2, v25'); e('v_lshlrev_b32 v29, 4, v29'); e('v_lshl_add_u32 v27, v27, 5, v29')
    e('v_lshrrev_b32 v29, 3, v3'); e('v_lshlrev_b32 v29, 6, v29'); e('v_lshl_add_u32 v29, v2, 4, v29')
    e('v_and_b32 v30, 1, v3'); e('v_lshl_add_u32 v29, v30, 3, v29'); e('v_and_b32 v31, 4, v3'); e('v_add_u32 v29, v29, v31')
    e('s_lshl_b32 s41, s35, 7'); e('v_add_u32 v29, s41, v29')
    e('v_lshrrev_b32 v31, 1, v3'); e('v_lshlrev_b32 v31, 11, v31'); e('v_lshl_add_u32 v31, v2, 5, v31'); e('v_lshl_add_u32 v31, v30, 4, v31')
    e('s_lshl_b32 s41, s35, 8'); e(f's_add_u32 s41, s41, 0x{H3O:x}'); e('v_add_u32 v31, s41, v31')
    e('global_load_ushort v32, v28, s[22:23]')
    e('global_load_dword v33, v29, s[8:9]')
    e('v_and_b32 v34, 3, v1'); e('v_lshl_add_u32 v34, v34, 2, v2'); e('s_and_b32 s41, s53, 31'); e('s_lshl_b32 s41, s41, 5'); e('v_lshl_add_u32 v34, v34, 1, s41')
    e('global_load_ushort v35, v34, s[26:27]')
    e('s_lshl_b32 s41, s35, 2'); e('v_lshl_add_u32 v36, v3, 5, s41')
    e(f'v_mov_b32 v37, {DUM-RED}'); e('v_cmp_gt_u32 vcc, 16, v1'); e('v_cndmask_b32 v36, v37, v36, vcc')
    e('v_lshrrev_b32 v37, 3, v3'); e('v_lshl_add_u32 v37, v37, 5, s41')
    e('v_and_b32 v38, 3, v1'); e('v_lshlrev_b32 v38, 4, v38')
    e('v_and_b32 v39, 1, v2'); e('v_lshlrev_b32 v39, 4, v39'); e('v_lshl_add_u32 v39, v25, 5, v39')
    e('v_lshrrev_b32 v40, 1, v2'); e('v_lshl_add_u32 v39, v40, 3, v39')
    e('s_lshl_b32 s40, s53, 11'); e('s_lshl_b32 s41, s35, 8'); e('s_add_u32 s40, s40, s41'); e(f's_add_u32 s40, s40, 0x{H4O:x}'); e('v_add_u32 v39, s40, v39')
    e('v_lshlrev_b32 v40, 4, v40'); e('v_lshrrev_b32 v40, v40, s34'); e('v_lshrrev_b32 v41, 8, v40')
    e('v_lshrrev_b32 v42, 2, v1'); e('v_lshlrev_b32 v42, 11, v42'); e('v_add_u32 v42, v42, v38')
    e('s_lshl_b32 s40, s53, 6'); e(f's_add_u32 s40, s40, 0x{H4O:x}'); e('v_add_u32 v42, s40, v42')
    e('v_add_u32 v43, 0x8000, v42'); e('v_add_u32 v44, 0x10000, v42')
    for d in range(4): e(f'v_mov_b32 v{48+d}, 0x3f803f80')
    W(4)
    e('s_waitcnt vmcnt(7)')
    for u in range(2):
        for cg in range(2):
            b = BB + (u * 2 + cg) * 4
            for a in range(2):
                e(f'ds_read_b64_tr_b16 v[{b+2*a}:{b+2*a+1}], v23 offset:{a*2048+u*256+cg*32}')
    e('s_waitcnt lgkmcnt(0)')
    e(f'v_mfma_f32_16x16x32_bf16 v[80:83], v[48:51], v[{BB}:{BB+3}], 0')
    e(f'v_mfma_f32_16x16x32_bf16 v[84:87], v[48:51], v[{BB+4}:{BB+7}], 0')
    e(f'v_mfma_f32_16x16x32_bf16 v[80:83], v[48:51], v[{BB+8}:{BB+11}], v[80:83]')
    e(f'v_mfma_f32_16x16x32_bf16 v[84:87], v[48:51], v[{BB+12}:{BB+15}], v[84:87]')
    e(f'ds_write_b32 v36, v80 offset:{QP}'); e(f'ds_write_b32 v36, v84 offset:{QP+512}')
    e('s_waitcnt lgkmcnt(0)')
    e('s_barrier')
    e(f'ds_read_b128 v[52:55], v27 offset:{QP}')
    e('s_waitcnt lgkmcnt(0)')
    e('v_add_f32 v52, v52, v53'); e('v_add_f32 v54, v54, v55'); e('v_add_f32 v45, v52, v54')
    e(f'v_add_f32_dpp v45, v45, v45 row_half_mirror {D}')
    e('v_mov_b32 v60, 0x3b000000')
    stamp(9)
    e('HPOLL:')
    e('global_load_dwordx4 v[64:67], v31, s[32:33] sc1')
    e('global_load_dwordx4 v[68:71], v31, s[32:33] offset:128 sc1')
    e('s_waitcnt vmcnt(0)')
    for k in range(8): e(f'v_xor_b32 v{64+k}, s{44+(k&3)}, v{64+k}')
    e('v_or3_b32 v72, v64, v65, v66'); e('v_or3_b32 v73, v67, v68, v69'); e('v_or3_b32 v72, v72, v70, v71')
    e('v_or_b32 v72, v72, v73'); e('v_and_b32 v72, 0xff, v72')
    e('v_cmp_ne_u32 vcc, 0, v72')
    for k in range(4): e(f'v_add_f32_dpp v{64+k}, v{64+k}, v{64+k} row_ror:8 row_mask:0xf bank_mask:0x3')
    e('s_cbranch_vccz HOK')
    e('s_sub_u32 s50, s50, 1')
    e('s_cbranch_scc0 HPOLL')
    P(4)
    e('HOK:')
    stamp(10)
    for k in range(4): e(f'v_add_f32_dpp v{64+k}, v{68+k}, v{68+k} row_ror:8 row_mask:0xf bank_mask:0xc')
    for k in range(2): e(f'v_add_f32_dpp v{64+k}, v{64+k}, v{64+k} row_shl:4 row_mask:0xf bank_mask:0x5')
    for k in range(2): e(f'v_add_f32_dpp v{64+k}, v{66+k}, v{66+k} row_shr:4 row_mask:0xf bank_mask:0xa')
    e('v_lshlrev_b32 v46, 16, v33')
    for k in range(2): e(f'v_add_f32_dpp v{64+k}, v{64+k}, v{64+k} quad_perm:[2,3,0,1] {D}')
    e('v_and_b32 v47, s48, v33')
    rbf(64, 64); rbf(65, 65)
    e('v_pk_add_f32 v[64:65], v[64:65], v[46:47]')
    e('v_cvt_pk_bf16_f32 v72, v64, v65')
    e(f'ds_write_b32 v29, v72 offset:{HB}')
    e('v_dot2_f32_bf16 v64, v72, v48, 0')
    for d in range(1, 4): e(f'v_mov_b32_dpp v{72+d}, v72 row_ror:{16-4*d} {D}')
    e('v_dot2_f32_bf16 v65, v72, v72, 0')
    def fmf(u, cg):
        b = BB + (u * 2 + cg) * 4; d = 80 + (u * 2 + cg) * 4
        e(f'v_mfma_f32_16x16x32_bf16 v[{d}:{d+3}], v[72:75], v[{b}:{b+3}], 0')
    fmf(0, 0)
    e('v_add_f32_dpp v64, v64, v64 row_ror:8 row_mask:0xf bank_mask:0x3')
    e('v_lshlrev_b32 v32, 16, v32')
    e('v_add_f32_dpp v64, v65, v65 row_ror:8 row_mask:0xf bank_mask:0xc')
    fmf(1, 0)
    e(f'v_add_f32_dpp v64, v64, v64 row_half_mirror {D}')
    fmf(0, 1)
    e(f'v_add_f32_dpp v64, v64, v64 quad_perm:[1,0,3,2] {D}')
    e('v_mov_b32 v65, v64')
    fmf(1, 1)
    e('v_permlane32_swap_b32 v64, v65'); e('v_add_f32 v64, v64, v65')
    e('v_mov_b32 v65, v64'); e('v_add_f32 v80, v80, v89'); e('v_permlane16_swap_b32 v64, v65'); e('v_add_f32 v64, v64, v65')
    e(f'ds_write_b32 v36, v80 offset:{RED}')
    e(f'ds_write_b32 v37, v64 offset:{ST}')
    e('v_add_f32 v84, v84, v93')
    e(f'ds_write_b32 v36, v84 offset:{RED+512}')
    e('s_waitcnt lgkmcnt(0)')
    P(4)
    e('s_barrier')
    e(f'ds_read_b128 v[56:59], v38 offset:{ST}')
    e(f'ds_read_b128 v[52:55], v27 offset:{RED}')
    e(f'ds_read_u16 v61, v34 offset:{HB}')
    e('s_waitcnt lgkmcnt(2)')
    e('v_pk_add_f32 v[56:57], v[56:57], v[58:59]'); e('v_add_f32 v56, v56, v57')
    e('s_waitcnt lgkmcnt(1)')
    e('v_pk_add_f32 v[52:53], v[52:53], v[54:55]')
    e(f'v_add_f32_dpp v56, v56, v56 quad_perm:[1,0,3,2] {D}')
    e('v_add_f32 v52, v52, v53')
    e(f'v_mul_f32_dpp v57, v56, v60 quad_perm:[0,0,0,0] {D}')
    e(f'v_mul_f32_dpp v58, v56, v60 quad_perm:[2,2,2,2] {D}')
    e('v_fma_f32 v58, -v57, v57, v58')
    e('v_max_f32 v58, 0, v58')
    rbf(58, 58)
    e(f'v_add_f32_dpp v52, v52, v52 row_half_mirror {D}')
    e(f'v_add_f32 v58, 0x{EPS:x}, v58'); rbf(58, 58)
    e('v_sqrt_f32 v58, v58')
    rbf(57, 57)
    rbf(58, 58)
    e('v_rcp_f32 v58, v58')
    e('v_fma_f32 v52, -v57, v45, v52')
    e('v_mul_f32 v52, v52, v58'); rbf(52, 52)
    e('v_add_f32 v52, v52, v32'); rbf(52, 52)
    e('v_max_f32 v52, 0, v52'); e('v_mul_f32 v52, v52, v52')
    e('v_cvt_pk_bf16_f32 v52, v52, v52')
    P(4)
    e('s_mov_b32 s40, 0x00ff00ff'); e('s_mov_b32 s41, s40')
    for t in range(4):
        a = 64 + 4 * t
        for d in range(4):
            s = t if d < 2 else 3 - t
            e(f'v_and_b32_dpp v{a+d}, v52, v{4+d} quad_perm:[{s},{s},{s},{s}] {D}')
        if t >= 1:
            c = '0' if t == 1 else 'v[80:83]'
            e(f'v_mfma_f32_16x16x32_bf16 v[80:83], v[{a-4}:{a-1}], v[{108+4*t}:{111+4*t}], {c}')
    e(f'v_mfma_f32_16x16x32_bf16 v[80:83], v[76:79], v[124:127], v[80:83]')
    e('v_permlane32_swap_b32 v80, v82'); e('v_permlane32_swap_b32 v81, v83')
    e(f'v_add_f32_dpp v80, v82, v80 row_ror:8 {D}'); e(f'v_add_f32_dpp v81, v83, v81 row_ror:8 {D}')
    e('v_bfi_b32 v80, v8, v40, v80'); e('v_bfi_b32 v81, v8, v41, v81')
    e('s_mov_b64 exec, s[40:41]')
    e('global_store_dwordx2 v39, v[80:81], s[32:33] sc1')
    e('s_mov_b64 exec, -1')
    stamp(11)
    e('s_cmp_lg_u32 s35, 0')
    e('s_cbranch_scc1 FIN')
    e('s_cmp_ge_u32 s53, 32')
    e('s_cbranch_scc1 FFIN')
    e('s_waitcnt lgkmcnt(0)')
    e('v_lshlrev_b32 v61, 16, v61'); e('v_lshlrev_b32 v35, 16, v35')
    e('s_mov_b32 s42, -1'); e('s_mov_b32 s43, 0xfff')
    P(4)
    if fdel: e(f's_sleep {fdel}')
    e('FPOLL:')
    e('global_load_dwordx4 v[64:67], v42, s[32:33] sc1')
    e('global_load_dwordx4 v[68:71], v43, s[32:33] sc1')
    for k in range(4): e(f'v_mov_b32 v{72+k}, s{44+k}')
    e('s_mov_b64 exec, s[42:43]')
    e('global_load_dwordx4 v[72:75], v44, s[32:33] sc1')
    e('s_mov_b64 exec, -1')
    e('s_waitcnt vmcnt(0)')
    for k in range(12): e(f'v_xor_b32 v{64+k}, s{44+(k&3)}, v{64+k}')
    e('v_or3_b32 v76, v64, v65, v66'); e('v_or3_b32 v77, v67, v68, v69'); e('v_or3_b32 v76, v76, v70, v71'); e('v_or3_b32 v77, v77, v72, v73')
    e('v_or3_b32 v76, v76, v74, v75'); e('v_or_b32 v76, v76, v77'); e('v_and_b32 v76, 0xff, v76')
    e('v_cmp_ne_u32 vcc, 0, v76')
    for k in (0, 2): e(f'v_pk_add_f32 v[{64+k}:{65+k}], v[{64+k}:{65+k}], v[{68+k}:{69+k}]')
    for k in (0, 2): e(f'v_pk_add_f32 v[{64+k}:{65+k}], v[{64+k}:{65+k}], v[{72+k}:{73+k}]')
    e('s_cbranch_vccz FOK')
    e('s_sub_u32 s50, s50, 1')
    e('s_cbranch_scc0 FPOLL')
    P(4)
    e('FOK:')
    stamp(12)
    e('v_permlane32_swap_b32 v64, v66'); e('v_permlane32_swap_b32 v65, v67')
    e('v_pk_add_f32 v[64:65], v[64:65], v[66:67]')
    e('s_mov_b32 s40, 0x000f000f'); e('s_mov_b32 s41, s40')
    e('v_permlane16_swap_b32 v64, v65')
    e('v_add_f32 v64, v64, v65')
    e(f'v_add_f32_dpp v64, v64, v64 row_ror:8 {D}'); e(f'v_add_f32_dpp v64, v64, v64 row_ror:4 {D}')
    rbf(64, 64); e('v_add_f32 v64, v64, v35'); rbf(64, 64); e('v_add_f32 v64, v64, v61')
    e('v_cvt_pk_bf16_f32 v64, v64, v64')
    e('s_mov_b64 exec, s[40:41]')
    e('global_store_short v34, v64, s[28:29]')
    e('s_cmp_lg_u32 s53, 0')
    e('s_cbranch_scc1 FFIN')
    e('s_mov_b64 exec, 1')
    e('v_mov_b32 v65, 0'); e('v_mov_b32 v66, s34')
    e('global_store_dword v65, v66, s[32:33]')
    e('FFIN:')
    stamp(13)
    e('s_branch FIN')
    L2 = []
    for l in L:
        if l.startswith(';@W'):
            site = int(l[3:])
            L2.append('s_mov_b64 exec, 0')
            for k, nm in enumerate(pads[site]):
                L2.append(f's_cmp_eq_u32 s35, {k}'); L2.append(f's_cbranch_scc1 {nm}')
            L2.append(f'WB{site}:'); L2.append('s_mov_b64 exec, -1')
        else: L2.append(l)
    out, npad = pad(L2)
    ad = sizes(out)
    print('size', ad[-1], 'nops', npad, {l.strip()[:-1]: ad[i] for i, l in enumerate(out) if l.strip().endswith(':')})
    out.append('.fill 700, 4, 0xbf810000')
    return wrap('\n'.join(out), 256, 512, LDS, 128), npad

if __name__ == '__main__':
    for spec in sys.argv[1:]:
        name, _, kw = spec.partition(':')
        kw = dict((k, int(v)) for k, v in (p.split('=') for p in kw.split(',') if p))
        s, n = gen(**kw); open(name + '.s', 'w').write(s)
```

```python
import sys
from asmlib import *

H1C, H2LO, H2O, H3O, H4O, H1O = 0x1000, 0x30000, 0x40000, 0x60000, 0x70000, 0x200000
COPYB = 0x100000
QP, QF, MX, RED, ST, HB, DUM, WB = 0, 4352, 4608, 5120, 7168, 7424, 8448, 16384
LDS = WB + 65536
TAGC = 0x9E3779B1
LOG2E = 0x3FB8AA3B
SCALE = 0x3DB504F3
EPS = 0x3727C5AC

def gen(stamps=0, maxtry=1 << 16, dual=24, cpf=1, warm=7, kpre=0, qpos=2, qsleep=4, ptouch=1, pdirty=1, w2pf=1, kbar=1, forcefb=0, osleep=0, hdel=0, fdel=0, nq=0, vpre=0, late=1, mrep=7, spf=3, h4pre=0, outpre=0, ncopy=8, fpre=0, hpipe=0):
    L = []
    e = L.append
    D = 'row_mask:0xf bank_mask:0xf'
    SV = 22
    def stamp(k):
        if stamps:
            e('s_memrealtime s[96:97]'); e('s_waitcnt lgkmcnt(0)'); e(f'v_writelane_b32 v{SV}, s96, {k}')
    def wave_sum(v, sdst, op='add'):
        for r in (8, 4, 2, 1): e(f'v_{op}_f32_dpp v{v}, v{v}, v{v} row_ror:{r} {D}')
        e(f'v_{op}_f32_dpp v{v}, v{v}, v{v} row_bcast:15 row_mask:0xa bank_mask:0xf')
        e(f'v_{op}_f32_dpp v{v}, v{v}, v{v} row_bcast:31 row_mask:0xc bank_mask:0xf')
        e(f'v_readlane_b32 s{sdst}, v{v}, 63')
    def rbf(d, s): e(f'v_cvt_pk_bf16_f32 v{d}, 0, v{s}')
    def reduce8(rd, st=512):
        for k in range(4): e(f'ds_read_b128 v[{48+4*k}:{51+4*k}], v{rd} offset:{QP+st*k}')
    def reduce8b(dp='row_ror:8'):
        e('s_waitcnt lgkmcnt(2)')
        e('v_pk_add_f32 v[48:49], v[48:49], v[52:53]'); e('v_pk_add_f32 v[50:51], v[50:51], v[54:55]')
        e('s_waitcnt lgkmcnt(0)')
        e('v_pk_add_f32 v[56:57], v[56:57], v[60:61]'); e('v_pk_add_f32 v[58:59], v[58:59], v[62:63]')
        e('v_pk_add_f32 v[48:49], v[48:49], v[56:57]'); e('v_pk_add_f32 v[50:51], v[50:51], v[58:59]')
        for k in range(4): e(f'v_add_f32_dpp v{48+k}, v{48+k}, v{48+k} {dp} {D}')
    KB, VB, BB = 96, 64, 96
    def ld(reg, base, first):
        if not first: e('v_add_u32 v12, 0x2000, v12')
        e(f'global_load_dwordx4 v[{reg}:{reg+3}], v12, {base} nt')
    def dma(q):
        e(f's_xor_b32 m0, s62, {q << 10}' if q else 's_mov_b32 m0, s62')
        e(f'global_load_lds_dwordx4 v{16+q}, s[20:21] nt')
    pads = {1: [], 2: [], 4: []}
    def P(site):
        if warm & site:
            nm = f'PAD{site}_{len(pads[site])}'; pads[site].append(nm)
            e(nm + ':'); e(f's_cbranch_execz WB{site}')
    def W(site):
        if warm & site: e(f';@W{site}')
    def qtry():
        e('s_load_dwordx16 s[64:79], s[98:99], 0')
        e('s_load_dwordx16 s[80:95], s[98:99], 64')
        e('s_load_dwordx16 s[8:23], s[98:99], 4096')
        e('s_load_dwordx8 s[24:31], s[98:99], 4160')
        e('s_load_dwordx8 s[56:63], s[98:99], 4192')
        e('s_add_u32 s98, s98, 256'); e('s_addc_u32 s99, s99, 0')

    e('s_cmp_ge_u32 s2, 256')
    e('s_cbranch_scc1 END')
    e('s_load_dwordx16 s[8:23], s[0:1], 0')
    e('s_load_dwordx2 s[32:33], s[0:1], 96')
    e('s_load_dwordx8 s[24:31], s[0:1], 64')
    if stamps: e('s_memrealtime s[96:97]'); e(f'v_mov_b32 v{SV}, 0')
    e('s_lshr_b32 s39, s2, 3')
    e('s_and_b32 s40, s39, 3')
    if cpf:
        e('s_getpc_b64 s[54:55]')
        e('s_lshl_b32 s41, s40, 7')
        e('s_add_u32 s54, s54, s41'); e('s_addc_u32 s55, s55, 0')
        e('v_lshlrev_b32 v10, 9, v0')
        e('v_mov_b32 v11, s55')
        e('v_add_co_u32 v10, vcc, s54, v10'); e('v_addc_co_u32 v11, vcc, 0, v11, vcc')
        e('v_cmp_gt_u32 vcc, 18, v0')
        e('s_and_saveexec_b64 s[56:57], vcc')
        e('s_cbranch_execz NOPF')
        e('global_load_dword v30, v[10:11], off')
        e('NOPF:')
        e('s_mov_b64 exec, -1')
    e('v_lshrrev_b32 v8, 6, v0')
    e('v_and_b32 v1, 63, v0')
    e('v_readfirstlane_b32 s35, v8')
    e('s_and_b32 s38, s2, 7')
    e('s_lshl_b32 s36, s38, 2')
    e('s_add_u32 s36, s36, s40')
    e('s_lshr_b32 s37, s39, 2')
    e('v_lshlrev_b32 v9, 4, v1')
    e('s_mul_i32 s41, s37, 3'); e('s_cmp_eq_u32 s37, 7'); e('s_cselect_b32 s41, 25, s41')
    e('s_lshl_b32 s41, s41, 3'); e('s_add_u32 s41, s41, s35'); e('s_lshl_b32 s41, s41, 10')
    e('s_lshl_b32 s42, s36, 20'); e('s_add_u32 s41, s41, s42'); e('s_add_u32 s41, s41, 0xC0000')
    e('v_add_u32 v13, s41, v9')
    e('v_mov_b32 v12, v13')
    e('v_lshrrev_b32 v2, 4, v1')
    e('v_and_b32 v3, 15, v1')
    e('s_cmp_lt_u32 s37, 4')
    e('s_cbranch_scc0 F_NQ')
    e('s_lshr_b32 s40, s37, 1'); e('s_lshl_b32 s40, s40, 3'); e('s_add_u32 s40, s40, s35'); e('s_lshl_b32 s40, s40, 5')
    e('v_lshrrev_b32 v10, 3, v1'); e('v_lshl_add_u32 v10, v10, 2, s40')
    e('s_lshl_b32 s41, s36, 1'); e('s_and_b32 s42, s37, 1'); e('s_add_u32 s41, s41, s42'); e('s_lshl_b32 s41, s41, 7')
    e('v_and_b32 v11, 0x70, v9'); e('v_lshl_add_u32 v11, v10, 13, v11'); e('v_add_u32 v11, s41, v11')
    e('v_lshlrev_b32 v10, 1, v10')
    e('s_waitcnt lgkmcnt(0)')
    e('global_load_dwordx4 v[16:19], v9, s[8:9]')
    e('global_load_dwordx2 v[20:21], v10, s[8:9]')
    for t in range(4):
        if t: e('v_add_u32 v11, 0x2000, v11')
        e(f'global_load_dwordx4 v[{64+4*t}:{67+4*t}], v11, s[14:15] nt')
    e('s_load_dword s34, s[32:33], 0')
    e('s_lshl_b32 s40, s36, 2'); e('s_add_u32 s40, s40, s37'); e('s_lshl_b32 s54, s40, 11'); e(f's_add_u32 s54, s54, 0x{H1O:x}')
    e('s_lshl_b32 s55, s40, 8'); e(f's_add_u32 s55, s55, 0x{H1C:x}')
    if ptouch:
        e('v_lshlrev_b32 v10, 7, v3'); e('v_add_u32 v10, s54, v10')
        e('s_cmp_lg_u32 s35, 0'); e('s_cbranch_scc1 NOTOUCH')
        e('global_load_dword v29, v10, s[32:33]')
        e('NOTOUCH:')
    if kpre:
        e('s_barrier')
        for t in range(kpre): ld(KB + 16 + 4 * t, 's[10:11]', t == 0)
    e('s_branch F_C')
    e('F_NQ:')
    e('s_waitcnt lgkmcnt(0)')
    if late: e('s_load_dword s34, s[32:33], 0')
    if spf:
        e('s_and_b32 s40, s39, 15')
        e('s_cmp_eq_u32 s35, 0'); e('s_cbranch_scc0 SPF1')
        if spf & 8: e('s_waitcnt lgkmcnt(0)')
        if spf & 1:
            e('s_lshl_b32 s41, s38, 4'); e('s_add_u32 s41, s41, s40'); e('s_lshl_b32 s41, s41, 15'); e('s_add_u32 s41, s41, 0x180')
            e('v_lshrrev_b32 v10, 1, v1'); e('v_lshlrev_b32 v10, 10, v10'); e('v_and_b32 v11, 1, v1'); e('v_lshl_add_u32 v10, v11, 6, v10'); e('v_add_u32 v10, s41, v10')
            e('global_load_dword v29, v10, s[16:17]')
        e('SPF1:')
        if spf & 6:
            e('s_cmp_eq_u32 s35, 1'); e('s_cbranch_scc0 SPF2')
            e('s_lshl_b32 s41, s38, 22'); e('s_mul_i32 s42, s40, 3072'); e('s_add_u32 s41, s41, s42'); e('s_and_b32 s42, s40, 8'); e('s_mul_i32 s42, s42, 3072')
            e('s_add_u32 s41, s41, s42'); e(f's_add_u32 s41, s41, {0x100000 + 0xC0000 + 3 * 8192}')
            e('v_min_u32 v10, 47, v1'); e('v_lshl_add_u32 v10, v10, 6, s41')
            if spf & 2: e('global_load_dword v29, v10, s[10:11]')
            if spf & 4: e('global_load_dword v28, v10, s[12:13]')
            e('SPF2:')
    if late == 2: e('s_cmp_lt_u32 s37, 6'); e('s_cbranch_scc0 NLATE')
    if late: e('s_waitcnt lgkmcnt(0)')
    e('NLATE:')
    for t in range(3): ld(KB + 16 + 4 * t, 's[10:11]', t == 0)
    if not late: e('s_load_dword s34, s[32:33], 0')
    e('s_cmp_lt_u32 s37, 6')
    e('s_cbranch_scc1 F_C')
    for t in range(4): ld(KB + 4 * t, 's[10:11]', False)
    e('F_C:')
    if stamps: e(f'v_writelane_b32 v{SV}, s96, 0')
    e('s_mov_b32 s48, 0xffff0000'); e(f's_mov_b32 s50, {maxtry}')
    e('v_and_b32 v14, 1, v1'); e('v_lshlrev_b32 v14, 4, v14'); e('v_mov_b32 v15, 0xffff'); e('v_lshlrev_b32 v14, v14, v15')
    e('v_bfe_u32 v15, v1, 1, 2')
    for d in range(4):
        e(f'v_cmp_eq_u32 vcc, {d}, v15'); e(f'v_cndmask_b32 v{4+d}, 0, v14, vcc')
    e('v_and_b32 v14, 1, v2'); e('v_lshlrev_b32 v14, 4, v14'); e('v_lshl_add_u32 v14, v3, 5, v14')
    e('v_mov_b32 v8, 0xff')
    e('s_cmp_lt_u32 s37, 4')
    e('s_cbranch_scc0 F_D')
    nk0 = kpre
    e(f's_waitcnt vmcnt({5+nk0})')
    for k in range(4):
        e(f'v_lshlrev_b32 v{48+2*k}, 16, v{16+k}'); e(f'v_and_b32 v{49+2*k}, s48, v{16+k}')
    e('v_pk_add_f32 v[56:57], v[48:49], v[50:51]'); e('v_pk_add_f32 v[58:59], v[52:53], v[54:55]')
    e('v_pk_add_f32 v[56:57], v[56:57], v[58:59]'); e('v_add_f32 v56, v56, v57')
    wave_sum(56, 40)
    e('v_mov_b32 v60, 0x3b000000')
    e('v_mul_f32 v62, s40, v60')
    for k in range(0, 8, 2): e(f'v_pk_add_f32 v[{48+k}:{49+k}], v[{48+k}:{49+k}], v[62:63] op_sel_hi:[1,0] neg_lo:[0,1] neg_hi:[0,1]')
    e('v_pk_mul_f32 v[56:57], v[48:49], v[48:49]')
    for k in range(2, 8, 2): e(f'v_pk_fma_f32 v[56:57], v[{48+k}:{49+k}], v[{48+k}:{49+k}], v[56:57]')
    e('v_add_f32 v56, v56, v57')
    wave_sum(56, 40)
    rbf(57, 62)
    e('v_mul_f32 v58, s40, v60'); rbf(58, 58)
    e(f'v_add_f32 v58, 0x{EPS:x}, v58'); rbf(58, 58)
    e('v_sqrt_f32 v58, v58'); rbf(58, 58)
    e('v_rcp_f32 v58, v58')
    e(f's_waitcnt vmcnt({4+nk0})')
    e('v_lshlrev_b32 v48, 16, v20'); e('v_and_b32 v49, s48, v20'); e('v_lshlrev_b32 v50, 16, v21'); e('v_and_b32 v51, s48, v21')
    for k in range(4): e(f'v_sub_f32 v{48+k}, v{48+k}, v57')
    for k in range(4): rbf(48 + k, 48 + k)
    for k in range(4): e(f'v_mul_f32 v{48+k}, v{48+k}, v58')
    for k in range(4): e(f'v_cvt_pk_bf16_f32 v{48+k}, v{48+k}, v{48+k}')
    for t in range(4):
        for d in range(4): e(f'v_and_b32 v{32+4*t+d}, v{48+t}, v{4+d}')
    e('s_lshl_b32 s40, s35, 9'); e('s_lshr_b32 s41, s35, 1'); e('s_lshl_b32 s41, s41, 6'); e('s_add_u32 s40, s40, s41'); e('v_add_u32 v10, s40, v14')
    e('v_bfe_u32 v11, v1, 2, 2'); e('v_and_b32 v16, 0x30, v9'); e('v_lshl_add_u32 v16, v2, 6, v16')
    e('v_lshl_add_u32 v17, v11, 8, v16'); e('v_add_u32 v17, s54, v17'); e('v_add_u32 v18, s55, v16')
    e('v_mul_u32_u24 v11, 0x440, v11'); e('v_add_u32 v11, v11, v16')
    e('s_mov_b32 s40, 0x00ff00ff'); e('s_mov_b32 s41, 0xff00ff00')
    for t in range(4):
        e(f's_waitcnt vmcnt({3-t+nk0})')
        e(f'v_mfma_f32_16x16x32_bf16 v[48:51], v[{32+4*t}:{35+4*t}], v[{64+4*t}:{67+4*t}], ' + ('0' if t == 0 else 'v[48:51]'))
    e('s_mov_b64 exec, s[40:41]')
    e(f'ds_write_b128 v10, v[48:51] offset:{QP}')
    e('s_mov_b64 exec, -1')
    e('s_waitcnt lgkmcnt(0)')
    stamp(1)
    e('s_cmp_lg_u32 s35, 7')
    e('s_barrier')
    e('s_cbranch_scc1 L_A')
    reduce8(11, 256)
    e(f's_add_u32 s42, s34, 0x{TAGC:x}')
    e('s_and_b32 s44, s42, 0xff'); e('s_bfe_u32 s45, s42, 0x80008'); e('s_bfe_u32 s46, s42, 0x80010'); e('s_lshr_b32 s47, s42, 24')
    e('s_mov_b32 s40, 0x000f000f'); e('s_mov_b32 s41, s40')
    reduce8b()
    for k in range(4): e(f'v_add_f32_dpp v{48+k}, v{48+k}, v{48+k} row_ror:4 {D}')
    for k in range(4): e(f'v_bfi_b32 v{48+k}, v8, s{44+k}, v{48+k}')
    e('global_store_dwordx4 v17, v[48:51], s[32:33]')
    if ncopy == 8: e('global_store_dwordx4 v17, v[48:51], s[32:33] offset:1024')
    e('s_mov_b64 exec, s[40:41]')
    e('global_store_dwordx4 v18, v[48:51], s[32:33] sc1')
    e('s_mov_b64 exec, -1')
    stamp(4)
    e('L_A:')
    e('s_barrier')
    for t in range(kpre, 3): ld(KB + 16 + 4 * t, 's[10:11]', t == 0)
    e('F_D:')
    stamp(14)
    e('s_lshl_b32 s40, s35, 9'); e('s_lshr_b32 s41, s35, 2'); e('s_lshl_b32 s42, s41, 7'); e('s_add_u32 s40, s40, s42'); e('v_add_u32 v14, s40, v14')
    e('s_movk_i32 s43, 0x880'); e('s_mov_b64 s[100:101], s[12:13]')
    e('v_and_b32 v10, 3, v1'); e('v_lshl_add_u32 v10, v2, 2, v10'); e('v_lshlrev_b32 v10, 5, v10'); e('v_and_b32 v15, 4, v1'); e('v_lshl_add_u32 v10, v15, 2, v10')
    e('v_lshrrev_b32 v15, 3, v3'); e('v_mad_u32_u24 v15, v15, s43, v10')
    e('s_lshl_b32 s40, s36, 3'); e('s_add_u32 s40, s40, s37'); e('s_lshl_b32 s52, s40, 9')
    e('s_lshl_b32 s40, s36, 13'); e('s_bfe_u32 s41, s35, 0x10001'); e('s_lshl_b32 s41, s41, 11'); e('s_add_u32 s40, s40, s41'); e('s_and_b32 s41, s35, 1'); e('s_lshl_b32 s41, s41, 7')
    e('s_add_u32 s40, s40, s41'); e(f's_add_u32 s40, s40, 0x{H1O:x}'); e('s_add_u32 s98, s32, s40'); e('s_addc_u32 s99, s33, 0')
    e('v_lshlrev_b32 v20, 4, v3')
    e('s_lshl_b32 s40, s35, 2'); e(f's_add_u32 s40, s40, {MX}'); e('v_mov_b32 v21, s40')
    e('v_mov_b32 v12, v13')
    W(1)
    e('s_waitcnt lgkmcnt(0)')
    e(f's_add_u32 s34, s34, 0x{TAGC:x}')
    e('s_and_b32 s44, s34, 0xff'); e('s_bfe_u32 s45, s34, 0x80008'); e('s_bfe_u32 s46, s34, 0x80010'); e('s_lshr_b32 s47, s34, 24')
    if pdirty:
        e('s_cmp_lg_u32 s35, 7'); e('s_cbranch_scc1 NOPD')
        e('s_not_b32 s40, s34')
        for k in range(4): e(f'v_mov_b32 v{48+k}, s40')
        e(f's_add_u32 s42, s52, 0x{H2O:x}'); e('v_add_u32 v10, s42, v9')
        e('s_lshr_b32 s42, s52, 5'); e(f's_add_u32 s42, s42, 0x{H2LO:x}'); e('v_mov_b32 v11, s42')
        e('v_cmp_gt_u32 vcc, 32, v1'); e('v_cndmask_b32 v10, v11, v10, vcc')
        e('s_mov_b32 exec_hi, 1')
        e('global_store_dwordx4 v10, v[48:51], s[32:33]')
        e('s_mov_b64 exec, -1')
        e('NOPD:')
    e(f's_mov_b32 s49, {0 if forcefb else ncopy - 1}')
    e('s_cmp_lt_u32 s37, 4')
    if kbar: e('s_barrier')
    def vq(a, b):
        for t in range(a, b): ld(VB + 16 + 4 * t, 's[100:101]', t == 0)
    e('s_mov_b32 s51, 0')
    if nq:
        e('s_cbranch_scc0 V_NQ')
        e('s_cmp_lt_u32 s35, 4')
        e('s_cbranch_scc0 V_NQ')
        vq(0, vpre)
        e(f's_mov_b32 s51, {nq}')
        e('s_branch FETCH2')
    e('V_NQ:')
    vq(0, 3)
    e('s_cmp_lt_u32 s37, 4')
    e('s_cbranch_scc1 FETCH')
    e('s_cmp_lt_u32 s37, 6')
    e('s_cbranch_scc0 V_A')
    e('s_lshl_b32 s62, s35, 13'); e(f's_add_u32 s62, s62, {WB}')
    e('s_lshr_b32 s40, s35, 2'); e('s_and_b32 s41, s35, 3')
    e('s_lshl_b32 s42, s38, 19'); e('s_lshl_b32 s43, s40, 18'); e('s_add_u32 s42, s42, s43')
    e('s_lshl_b32 s43, s41, 15'); e('s_add_u32 s42, s42, s43'); e('s_and_b32 s43, s39, 7'); e('s_lshl_b32 s43, s43, 7'); e('s_add_u32 s42, s42, s43')
    e('v_lshrrev_b32 v16, 3, v1'); e('v_and_b32 v17, 0x70, v9'); e('v_lshl_add_u32 v16, v16, 10, v17'); e('v_add_u32 v16, s42, v16')
    for t in range(8):
        g, hb = t & 3, t >> 2
        e(f's_add_u32 m0, s62, {t << 10}')
        if t: e(f'v_xor_b32 v17, 0x{g*32 | g*8192 | hb << 17:x}, v16')
        e(f'global_load_lds_dwordx4 v{17 if t else 16}, s[16:17] nt')
    e('s_branch FETCH')
    e('V_A:')
    for t in range(4):
        ld(VB + 4 * t, 's[12:13]', False)
    e('FETCH:')
    stamp(15)
    e('s_cmp_lt_u32 s35, 4')
    e('s_cbranch_scc0 QDONE')
    e('FETCH2:')
    qtry()
    e('s_lshl_b32 s42, s35, 6'); e('v_mov_b32 v11, s42')
    QA = list(range(64, 96, 2)); QB = list(range(8, 32, 2)) + list(range(56, 64, 2))
    e('FCHK:')
    e('s_waitcnt lgkmcnt(0)')
    for k, r in enumerate(QA + QB): e(f's_xor_b64 s[{r}:{r+1}], s[{r}:{r+1}], s[{44+2*(k&1)}:{45+2*(k&1)}]')
    e('s_or_b64 s[40:41], s[64:65], s[66:67]')
    for k, r in enumerate((QA + QB)[2:]):
        e(f's_or_b64 s[40:41], s[40:41], s[{r}:{r+1}]')
        if k < 16: e(f'v_mov_b64 v[{32+2*k}:{33+2*k}], s[{QA[k]}:{QA[k]+1}]')
        else: e(f'v_pk_add_f32 v[{2*k}:{1+2*k}], s[{QB[k-16]}:{QB[k-16]+1}], v[{2*k}:{1+2*k}]')
    e('s_or_b32 s40, s40, s41'); e('s_and_b32 s40, s40, 0xff')
    if forcefb: e('s_cmp_eq_u32 s49, 0')
    e('s_cbranch_scc0 FOKQ')
    e('s_sub_u32 s49, s49, 1')
    e('s_cbranch_scc1 QFB')
    if qsleep: e(f's_sleep {qsleep}')
    qtry()
    if nq:
        e('s_sub_u32 s51, s51, 1'); e('s_cselect_b32 s51, 0, s51'); e('s_cbranch_scc1 FCHK')
        e('s_cmp_eq_u32 s51, 0'); e('s_cbranch_scc0 FCHK')
        vq(vpre, 3)
    e('s_branch FCHK')
    P(1)
    e('FOKQ:')
    for k in (14, 15): e(f'v_pk_add_f32 v[{32+2*k}:{33+2*k}], s[{QB[k]}:{QB[k]+1}], v[{32+2*k}:{33+2*k}]')
    e('s_mov_b64 exec, 1')
    for q in range(4):
        for k in range(4 * q, 4 * q + 4): e(f'v_cvt_pk_bf16_f32 v{32+k}, v{32+2*k}, v{33+2*k}')
        e(f'ds_write_b128 v11, v[{32+4*q}:{35+4*q}] offset:{QF+16*q}')
    e('s_mov_b64 exec, -1')
    if nq:
        e('s_cmp_eq_u32 s51, 0'); e('s_cbranch_scc1 QDONE')
        vq(vpre, 3)
    e('QDONE:')
    if stamps:
        e(f'v_readlane_b32 s40, v{SV}, 0'); e('s_add_u32 s41, s49, 1'); e('s_mul_i32 s41, s41, 100'); e('s_add_u32 s40, s40, s41'); e(f'v_writelane_b32 v{SV}, s40, 2')
    e(f'v_mov_b32 v63, 0x{LOG2E:x}')
    for k in (52, 53, 54, 55, 61): e(f'v_mov_b32 v{k}, 0xff800000')
    e('v_and_b32 v10, 0x70, v9'); e('v_lshl_add_u32 v10, v2, 7, v10')
    e(f's_add_u32 s42, s52, 0x{H2O:x}'); e('v_add_u32 v10, s42, v10'); e(f'v_add_u32 v11, 0x{COPYB:x}, v10')
    e('s_lshr_b32 s42, s52, 5'); e(f's_add_u32 s42, s42, 0x{H2LO:x}')
    e('v_mov_b32 v16, s42'); e(f'v_add_u32 v17, 0x{COPYB:x}, v16')
    e('v_and_b32 v18, 7, v1'); e('v_lshlrev_b32 v18, 2, v18'); e('v_and_b32 v19, 8, v1'); e('v_lshlrev_b32 v19, 1, v19')
    e('s_mov_b32 s40, 0x0f0f0f0f'); e('s_mov_b32 s41, s40'); e('s_mov_b32 s42, 0x00ff00ff'); e('s_mov_b32 s43, s42')
    e('s_cmp_lt_u32 s37, 4')
    e('s_waitcnt lgkmcnt(0)')
    for k in range(36, 40): e(f'v_mov_b32 v{k}, s34')
    stamp(3)
    e('s_barrier')
    e(f'ds_read_b128 v[48:51], v20 offset:{QF}')
    e('s_cbranch_scc0 QSK')
    e('s_waitcnt vmcnt(3)')
    e('QSK:')
    e('s_waitcnt vmcnt(11) lgkmcnt(0)')
    e('s_load_dwordx16 s[8:23], s[0:1], 0'); e('s_load_dwordx8 s[24:31], s[0:1], 64')
    def dots(r, kb, n):
        for k in range(4):
            for t in range(n): e(f'v_dot2_f32_bf16 v{r+t}, v{kb+4*t+k}, v{48+k}, ' + ('0' if k == 0 else f'v{r+t}'))
    e('s_cmp_lt_u32 s37, 6')
    dots(58, KB + 16, 3)
    e('s_cbranch_scc1 SMX')
    e('s_waitcnt vmcnt(7)')
    dots(52, KB, 4)
    e('SMX:')
    P(1)
    e('s_nop 1')
    for r in (58, 52):
        e(f'v_add_f32_dpp v{r}, v{r}, v{r} row_ror:8 row_mask:0xf bank_mask:0x3')
        e(f'v_add_f32_dpp v{r+1}, v{r+1}, v{r+1} row_ror:8 row_mask:0xf bank_mask:0x3')
    for r in (58, 52):
        e(f'v_add_f32_dpp v{r}, v{r+2}, v{r+2} row_ror:8 row_mask:0xf bank_mask:0xc')
        e(f'v_add_f32_dpp v{r+1}, v{r+3}, v{r+3} row_ror:8 row_mask:0xf bank_mask:0xc')
    for r in (58, 52): e(f'v_add_f32_dpp v{r}, v{r}, v{r} row_shl:4 row_mask:0xf bank_mask:0x5')
    for r in (58, 52): e(f'v_add_f32_dpp v{r}, v{r+1}, v{r+1} row_shr:4 row_mask:0xf bank_mask:0xa')
    for r in (58, 52): e(f'v_add_f32_dpp v{r}, v{r}, v{r} quad_perm:[1,0,3,2] {D}')
    for r in (58, 52): e(f'v_add_f32_dpp v{r}, v{r}, v{r} quad_perm:[2,3,0,1] {D}')
    rbf(58, 58); rbf(52, 52); e(f'v_mul_f32 v58, 0x{SCALE:x}, v58'); e(f'v_mul_f32 v52, 0x{SCALE:x}, v52'); rbf(58, 58); rbf(52, 52)
    e('v_max_f32 v54, v52, v58')
    e(f'v_max_f32_dpp v54, v54, v54 row_ror:8 {D}'); e(f'v_max_f32_dpp v54, v54, v54 row_ror:4 {D}')
    e('v_mov_b32 v53, v54'); e('v_permlane32_swap_b32 v53, v54'); e('v_max_f32 v54, v53, v54')
    e('v_mov_b32 v53, v54'); e('v_permlane16_swap_b32 v53, v54'); e('v_max_f32 v54, v53, v54')
    e('v_sub_f32 v58, v58, v54'); e('v_sub_f32 v52, v52, v54'); e('v_mul_f32 v58, v58, v63'); e('v_mul_f32 v52, v52, v63')
    e('v_exp_f32 v58, v58'); e('v_exp_f32 v52, v52')
    e('v_cvt_pk_bf16_f32 v57, v58, v58'); e('v_cvt_pk_bf16_f32 v56, v52, v52')
    e('v_add_f32 v55, v58, v52')
    def amask(t):
        s, b = (56, 4 * t) if t < 4 else (57, 4 * (t - 4))
        for d in range(4): e(f'v_and_b32_dpp v{KB+4*t+d}, v{s}, v{4+d} row_newbcast:{b} {D}')
    def pv(t): e(f'v_mfma_f32_16x16x32_bf16 v[44:47], v[{KB+4*t}:{KB+3+4*t}], v[{VB+4*t}:{VB+3+4*t}], ' + ('0' if t == 4 else 'v[44:47]'))
    amask(4)
    e(f'v_add_f32_dpp v55, v55, v55 row_ror:8 {D}')
    amask(5)
    e(f'v_add_f32_dpp v55, v55, v55 row_ror:4 {D}')
    e('v_mov_b32 v53, v55')
    amask(6)
    e('v_permlane32_swap_b32 v53, v55'); e('v_add_f32 v55, v53, v55'); e('v_mov_b32 v53, v55')
    e('v_permlane16_swap_b32 v53, v55'); e('v_add_f32 v55, v53, v55')
    e('s_mov_b64 exec, 1'); e('ds_write2_b32 v21, v54, v55 offset0:0 offset1:8'); e('s_mov_b64 exec, -1')
    stamp(5)
    e('s_cbranch_scc1 NOTA')
    for k, t in enumerate((4, 5, 6, 0, 1, 2, 3)):
        if k < 4: amask(k)
        e(f's_waitcnt vmcnt({6-k})'); pv(t)
    e('s_nop 5')
    e('s_branch PVD')
    P(1)
    e('NOTA:')
    e('s_cmp_lt_u32 s37, 4')
    e('s_cbranch_scc1 LQ2')
    e('s_waitcnt vmcnt(8)')
    pv(4); pv(5); pv(6)
    e('s_nop 5')
    e('s_branch PVD')
    e('LQ2:')
    for t in range(3):
        e(f's_waitcnt vmcnt({2-t})'); pv(4 + t)
    e('PVD:')
    e('s_mov_b64 exec, 0xffffffff')
    e(f'ds_write_b128 v14, v[44:47] offset:{QP}')
    e('s_mov_b64 exec, -1')
    e('s_cmp_lg_u32 s35, 7')
    e('s_waitcnt lgkmcnt(0)')
    stamp(7)
    e('s_barrier')
    e('s_cbranch_scc1 L_LSE')
    e(f'ds_read_b128 v[40:43], v19 offset:{MX}')
    e('v_mov_b32 v34, v63')
    reduce8(15)
    e('s_waitcnt lgkmcnt(4)')
    e('v_max3_f32 v32, v40, v41, v42'); e('v_max_f32 v32, v32, v43')
    e(f'v_max_f32_dpp v32, v32, v32 row_ror:8 {D}')
    for k in (40, 42): e(f'v_pk_add_f32 v[{k}:{k+1}], v[{k}:{k+1}], v[32:33] op_sel_hi:[1,0] neg_lo:[0,1] neg_hi:[0,1]')
    for k in (40, 42): e(f'v_pk_mul_f32 v[{k}:{k+1}], v[{k}:{k+1}], v[34:35] op_sel_hi:[1,0]')
    for k in range(40, 44): e(f'v_exp_f32 v{k}, v{k}')
    e('s_waitcnt lgkmcnt(0)')
    for h in (0, 2): e(f'v_pk_mul_f32 v[{48+h}:{49+h}], v[{48+h}:{49+h}], v[40:41] op_sel_hi:[1,0]')
    for h in (0, 2): e(f'v_pk_mul_f32 v[{56+h}:{57+h}], v[{56+h}:{57+h}], v[42:43] op_sel_hi:[1,0]')
    for h in (0, 2): e(f'v_pk_fma_f32 v[{48+h}:{49+h}], v[{52+h}:{53+h}], v[40:41], v[{48+h}:{49+h}] op_sel:[0,1,0]')
    for h in (0, 2): e(f'v_pk_fma_f32 v[{56+h}:{57+h}], v[{60+h}:{61+h}], v[42:43], v[{56+h}:{57+h}] op_sel:[0,1,0]')
    for h in (0, 2): e(f'v_pk_add_f32 v[{48+h}:{49+h}], v[{48+h}:{49+h}], v[{56+h}:{57+h}]')
    for k in range(4): e(f'v_add_f32_dpp v{48+k}, v{48+k}, v{48+k} row_ror:8 {D}')
    e('s_mov_b64 exec, s[40:41]')
    e('v_cvt_pk_bf16_f32 v38, v48, v49'); e('v_cvt_pk_bf16_f32 v39, v50, v51')
    e('s_not_b64 exec, exec')
    e('v_cvt_pk_bf16_f32 v36, v48, v49'); e('v_cvt_pk_bf16_f32 v37, v50, v51')
    e('s_mov_b64 exec, s[42:43]')
    e('global_store_dwordx4 v10, v[36:39], s[32:33]')
    e('global_store_dwordx4 v11, v[36:39], s[32:33] sc1')
    e('s_mov_b64 exec, -1')
    stamp(8)
    e('s_branch L_B5')
    P(1)
    e('L_LSE:')
    e('s_cmp_lg_u32 s35, 0')
    e('s_cbranch_scc1 L_B5')
    e(f'ds_read_b32 v48, v18 offset:{MX}'); e(f'ds_read_b32 v49, v18 offset:{MX+32}')
    e('s_waitcnt lgkmcnt(1)')
    e(f'v_max_f32_dpp v36, v48, v48 quad_perm:[1,0,3,2] {D}')
    e(f'v_max_f32_dpp v36, v36, v36 quad_perm:[2,3,0,1] {D}')
    e(f'v_max_f32_dpp v36, v36, v36 row_half_mirror {D}')
    e('v_sub_f32 v48, v48, v36'); e('v_mul_f32 v48, v48, v63'); e('v_exp_f32 v48, v48')
    e('s_waitcnt lgkmcnt(0)')
    e('v_mul_f32 v37, v48, v49')
    e(f'v_add_f32_dpp v37, v37, v37 quad_perm:[1,0,3,2] {D}')
    e(f'v_add_f32_dpp v37, v37, v37 quad_perm:[2,3,0,1] {D}')
    e(f'v_add_f32_dpp v37, v37, v37 row_half_mirror {D}')
    e('s_mov_b64 exec, 1')
    e('global_store_dwordx4 v16, v[36:39], s[32:33]')
    e('global_store_dwordx4 v17, v[36:39], s[32:33] sc1')
    e('s_mov_b64 exec, -1')
    stamp(6)
    e('L_B5:')
    e('s_lshr_b32 s40, s37, 1')
    e('s_cmp_eq_u32 s40, 2')
    e('s_barrier')
    e('s_cbranch_scc0 NOTOP')

    e('s_lshr_b32 s40, s35, 2'); e('s_and_b32 s41, s35, 3')
    e('s_lshl_b32 s62, s35, 13'); e(f's_add_u32 s62, s62, {WB}')
    e('v_and_b32 v26, 1, v2'); e('v_lshlrev_b32 v24, 2, v26'); e('v_and_b32 v25, 7, v3'); e('v_xor_b32 v24, v24, v25')
    e('v_lshrrev_b32 v27, 1, v2'); e('v_lshl_add_u32 v24, v27, 3, v24'); e('v_lshlrev_b32 v24, 4, v24')
    e('s_lshl_b32 s42, s38, 1'); e('s_add_u32 s42, s42, s40')
    e('s_lshl_b32 s43, s42, 8'); e(f's_add_u32 s43, s43, 0x{H2LO:x}'); e('v_add_u32 v24, s43, v24')
    e('s_lshl_b32 s43, s42, 13'); e('s_lshl_b32 s42, s41, 7'); e('s_add_u32 s43, s43, s42'); e(f's_add_u32 s43, s43, 0x{H2O:x}')
    e('v_lshlrev_b32 v25, 9, v3'); e('v_lshl_add_u32 v25, v2, 4, v25'); e('v_add_u32 v25, s43, v25')
    e('v_lshl_add_u32 v27, v26, 1, v27'); e('v_lshl_add_u32 v27, v27, 4, v3'); e('v_lshlrev_b32 v27, 2, v27')
    e('s_lshl_b32 s42, s38, 11'); e('s_and_b32 s43, s39, 7'); e('s_lshl_b32 s43, s43, 8'); e('s_add_u32 s42, s42, s43'); e(f's_add_u32 s42, s42, 0x{H3O:x}')
    e('v_add_u32 v27, s42, v27')
    e('v_and_b32 v16, 3, v3'); e('v_lshlrev_b32 v16, 3, v16'); e('v_lshrrev_b32 v28, v16, s34')
    e('v_lshrrev_b32 v17, 2, v3'); e('v_lshl_add_u32 v16, v17, 7, v16'); e('v_mul_u32_u24 v17, 1056, v2'); e('v_add3_u32 v16, v16, v17, s62')
    for cg in range(1, 4): e(f'v_xor_b32 v{16+cg}, {32*cg}, v16')
    e('v_lshlrev_b32 v29, 2, v1'); e('s_lshl_b32 s42, s35, 8'); e('v_add_u32 v26, s42, v29')
    for r in range(8): e(f'v_mov_b32 v{56+r}, 0')
    e(f's_mov_b32 s49, {dual}')
    W(2)
    def opoll():
        e('global_load_dwordx4 v[48:51], v24, s[32:33] sc1')
        e('global_load_dwordx4 v[64:67], v25, s[32:33] sc1')
        e('global_load_dwordx4 v[68:71], v25, s[32:33] offset:64 sc1')
    opoll()
    e('s_waitcnt vmcnt(3)')
    for hb in range(2):
        for cg in range(4):
            b = BB + (hb * 4 + cg) * 4
            for a in range(2):
                e(f'ds_read_b64_tr_b16 v[{b+2*a}:{b+2*a+1}], v{16+cg} offset:{hb*4096+a*512}')
    stamp(9)
    e('s_branch OCHK')
    e('OPOLL:')
    e('s_sub_u32 s49, s49, 1')
    e('s_cmp_lg_u32 s49, 0')
    e('s_cbranch_scc1 OP2')
    e(f'v_add_u32 v24, 0x{COPYB:x}, v24'); e(f'v_add_u32 v25, 0x{COPYB:x}, v25')
    e('OP2:')
    if osleep: e(f's_sleep {osleep}')
    if mrep & 1:
        e('s_mov_b64 exec, vcc'); e('global_load_dwordx4 v[48:51], v24, s[32:33] sc1')
        e('s_mov_b64 exec, s[40:41]'); e('global_load_dwordx4 v[64:67], v25, s[32:33] sc1')
        e('global_load_dwordx4 v[68:71], v25, s[32:33] offset:64 sc1')
        e('s_mov_b64 exec, -1')
    else: opoll()
    e('OCHK:')
    e('s_waitcnt vmcnt(0)')
    e('v_cmp_ne_u32 s[40:41], s34, v64'); e('v_cmp_ne_u32 s[42:43], s34, v71'); e('v_cmp_ne_u32 vcc, s34, v51')
    for k in range(4): e(f'v_mov_b32_dpp v{56+k}, v{66+k} quad_perm:[0,1,2,3] row_mask:0xf bank_mask:0x3')
    e('s_or_b64 s[40:41], s[40:41], s[42:43]'); e('s_or_b64 s[42:43], vcc, s[40:41]')
    e('s_cbranch_scc0 OOK')
    e('s_sub_u32 s50, s50, 1')
    e('s_cbranch_scc0 OPOLL')
    P(2)
    e('OOK:')
    stamp(10)
    def omf(hb, cg):
        b = BB + (hb * 4 + cg) * 4; d = 80 + cg * 4
        e(f'v_mfma_f32_16x16x32_bf16 v[{d}:{d+3}], v[{56+4*hb}:{59+4*hb}], v[{b}:{b+3}], ' + (f'v[{d}:{d+3}]' if hb else '0'))
    e('s_waitcnt lgkmcnt(0)')
    omf(0, 0)
    e(f'v_max_f32_dpp v52, v48, v48 quad_perm:[1,0,3,2] {D}')
    for k in range(2): e(f'v_mov_b32_dpp v{60+k}, v{66+k} quad_perm:[0,1,2,3] row_mask:0xf bank_mask:0xc')
    omf(0, 1)
    e(f'v_max_f32_dpp v52, v52, v52 quad_perm:[2,3,0,1] {D}')
    for k in range(2, 4): e(f'v_mov_b32_dpp v{60+k}, v{66+k} quad_perm:[0,1,2,3] row_mask:0xf bank_mask:0xc')
    omf(0, 2)
    e(f'v_max_f32_dpp v52, v52, v52 row_half_mirror {D}')
    e('v_sub_f32 v52, v48, v52')
    omf(0, 3)
    e(f'v_mul_f32 v52, 0x{LOG2E:x}, v52'); e('v_exp_f32 v52, v52')
    omf(1, 0)
    e('v_mul_f32 v53, v52, v49')
    omf(1, 1)
    e(f'v_mov_b32_dpp v72, v52 row_newbcast:0 {D}')
    e(f'v_add_f32_dpp v53, v53, v53 quad_perm:[1,0,3,2] {D}')
    omf(1, 2)
    e(f'v_mov_b32_dpp v73, v52 row_newbcast:1 {D}')
    e(f'v_add_f32_dpp v53, v53, v53 quad_perm:[2,3,0,1] {D}')
    omf(1, 3)
    e(f'v_mov_b32_dpp v74, v52 row_newbcast:2 {D}')
    e(f'v_add_f32_dpp v53, v53, v53 row_half_mirror {D}')
    e(f'v_mov_b32_dpp v75, v52 row_newbcast:3 {D}')
    e('v_rcp_f32 v53, v53')
    for cg in range(4):
        e(f'v_pk_mul_f32 v[{32+2*cg}:{33+2*cg}], v[{80+4*cg}:{81+4*cg}], v[72:73]')
        e(f'v_pk_fma_f32 v[{32+2*cg}:{33+2*cg}], v[{82+4*cg}:{83+4*cg}], v[74:75], v[{32+2*cg}:{33+2*cg}]')
        e(f'v_add_f32 v{40+cg}, v{32+2*cg}, v{33+2*cg}')
        if cg & 1: e(f'v_pk_mul_f32 v[{39+cg}:{40+cg}], v[{39+cg}:{40+cg}], v[52:53] op_sel:[0,1]')
        if cg == 2: e('v_permlane32_swap_b32 v40, v41'); e('v_add_f32 v40, v40, v41')
    e('s_cmp_lg_u32 s35, 0')
    e('v_permlane32_swap_b32 v42, v43')
    e('v_add_f32 v42, v42, v43')
    e('v_permlane16_swap_b32 v40, v42')
    e('v_add_f32 v40, v40, v42')
    e(f'ds_write_b32 v26, v40 offset:{RED}')
    e('s_waitcnt lgkmcnt(0)')
    stamp(11)
    e('s_barrier')
    e('s_cbranch_scc1 FIN')
    for k in range(4): e(f'ds_read2st64_b32 v[{48+2*k}:{49+2*k}], v29 offset0:{RED//256+2*k} offset1:{RED//256+2*k+1}')
    e('s_waitcnt lgkmcnt(2)')
    e('v_pk_add_f32 v[48:49], v[48:49], v[50:51]')
    e('s_waitcnt lgkmcnt(0)')
    e('v_pk_add_f32 v[52:53], v[52:53], v[54:55]')
    e('v_pk_add_f32 v[48:49], v[48:49], v[52:53]'); e('v_add_f32 v48, v48, v49')
    e('v_bfi_b32 v48, v8, v28, v48')
    e('global_store_dword v27, v48, s[32:33] sc1')
    stamp(12)
    e('FIN:')
    if stamps:
        e('s_cmp_eq_u32 s35, 0'); e('s_cselect_b32 s41, 0, 128'); e('s_cbranch_scc1 FL'); e('s_cmp_eq_u32 s35, 7'); e('s_cbranch_scc0 END')
        e('FL:'); e('s_mov_b64 exec, 0xffff')
        e('s_lshl_b32 s40, s2, 8'); e('s_add_u32 s40, s40, s41'); e('s_add_u32 s40, s40, 0x8000000'); e('v_lshlrev_b32 v24, 3, v1'); e('v_add_u32 v24, s40, v24')
        e(f'v_mov_b32 v{SV+1}, 0'); e(f'global_store_dwordx2 v24, v[{SV}:{SV+1}], s[32:33]')
    e('END:')
    e('s_endpgm')
    P(2)

    e('QFB:')
    e('s_lshl_b32 s40, s36, 10'); e('s_lshl_b32 s41, s35, 7'); e('s_add_u32 s40, s40, s41'); e(f's_add_u32 s40, s40, 0x{H1C:x}')
    e('v_and_b32 v51, 31, v1'); e('v_lshl_add_u32 v10, v51, 2, s40')
    e('v_and_b32 v50, 3, v3'); e('v_lshlrev_b32 v50, 3, v50'); e('v_lshrrev_b32 v50, v50, s34'); e('v_and_b32 v50, 0xff, v50')
    e('v_lshl_add_u32 v11, v51, 1, v11')
    e('QFB1:')
    e('global_load_dword v48, v10, s[32:33] sc1')
    e('global_load_dword v49, v10, s[32:33] offset:512 sc1')
    e('s_waitcnt vmcnt(0)')
    e('v_xor_b32 v48, v48, v50'); e('v_xor_b32 v49, v49, v50'); e('v_or_b32 v51, v48, v49'); e('v_and_b32 v51, 0xff, v51')
    e('v_cmp_ne_u32 vcc, 0, v51')
    e('s_nop 4')
    e('s_cbranch_vccz QFB2')
    e('s_sub_u32 s50, s50, 1')
    e('s_cbranch_scc0 QFB1')
    e('QFB2:')
    e('v_add_f32 v48, v48, v49'); e('v_cvt_pk_bf16_f32 v48, v48, v48')
    e(f'ds_write_b16 v11, v48 offset:{QF}')
    e('s_branch QDONE')

    P(1)
    e('NOTOP:')
    e('s_min_u32 s40, s38, 3'); e('s_mul_i32 s41, s38, 5'); e('s_add_u32 s40, s40, s41')
    e('s_cmp_lt_u32 s37, 4')
    e('s_cbranch_scc0 NOTQ')
    if w2pf:
        e('s_cmp_lt_u32 s35, 4'); e('s_cbranch_scc1 PFW1')
        e('s_cmp_eq_u32 s35, 7'); e('s_cbranch_scc1 FIN')
        e('s_lshl_b32 s40, s40, 15'); e('s_mul_i32 s41, s39, 3'); e('s_add_u32 s41, s41, s35'); e('s_sub_u32 s41, s41, 4'); e('s_lshl_b32 s41, s41, 12'); e('s_add_u32 s40, s40, s41')
        e(f's_min_u32 s40, s40, {1376*1024-4096}')
        e('v_lshl_add_u32 v16, v1, 6, s40')
        e('global_load_dword v48, v16, s[24:25]')
        e('s_waitcnt vmcnt(0)')
        e('s_branch FIN')
        e('PFW1:')
        e('s_lshl_b32 s41, s39, 2'); e('s_add_u32 s41, s41, s35'); e('s_mul_i32 s41, s41, 8*2752'); e('s_lshl_b32 s40, s40, 6'); e('s_add_u32 s40, s40, s41')
        e('v_lshrrev_b32 v16, 3, v1'); e('v_mul_u32_u24 v16, 2752, v16'); e('v_and_b32 v17, 7, v1'); e('v_min_u32 v17, 5, v17'); e('v_lshl_add_u32 v16, v17, 6, v16')
        e('v_add_u32 v16, s40, v16'); e(f'v_min_u32 v16, {512*2752-4}, v16')
        e('global_load_dword v48, v16, s[20:21]')
        e('s_waitcnt vmcnt(0)')
    e('s_branch FIN')
    e('NOTQ:')
    e('s_cmp_lt_u32 s2, 235')
    e('s_cbranch_scc0 FIN')
    e('s_sub_u32 s41, s39, 24'); e('s_add_u32 s53, s40, s41')
    e('s_lshl_b32 s62, s35, 12'); e(f's_add_u32 s62, s62, {WB}')
    e('v_and_b32 v24, 3, v3'); e('v_lshrrev_b32 v16, 2, v1'); e('v_lshlrev_b32 v17, 4, v24')
    e('v_lshrrev_b32 v23, 2, v3'); e('v_lshlrev_b32 v23, 6, v23'); e('v_lshl_add_u32 v23, v2, 9, v23')
    e('v_lshl_add_u32 v23, v24, 3, v23'); e('v_add_u32 v23, s62, v23')
    e('s_and_b32 s54, s53, 1')
    e('s_mul_i32 s40, s35, 64*2752'); e('s_lshl_b32 s41, s53, 6'); e('s_add_u32 s40, s40, s41')
    e('s_movk_i32 s42, 2752')
    e('v_mad_u32_u24 v16, v16, s42, v17')
    e('s_mul_i32 s41, s54, 32*2752'); e('s_add_u32 s42, s40, s41'); e('s_sub_u32 s40, s40, s41'); e(f's_add_u32 s40, s40, {32*2752}')
    e('v_add_u32 v18, s40, v16'); e('v_add_u32 v16, s42, v16')
    e(f'v_add_u32 v17, {16*2752}, v16'); e(f'v_add_u32 v19, {16*2752}, v18')
    e('s_lshl_b32 s43, s54, 11'); e('s_add_u32 s62, s62, s43')
    for q in range(4): dma(q)
    e('v_lshrrev_b32 v24, 3, v1')
    e('v_and_b32 v25, 7, v1')
    e('v_lshlrev_b32 v26, 12, v24'); e('v_lshl_add_u32 v26, v25, 4, v26')
    e('s_lshl_b32 s40, s53, 15'); e('s_lshl_b32 s41, s35, 7'); e('s_add_u32 s40, s40, s41'); e('v_add_u32 v26, s40, v26')
    for t in range(4): e(f'global_load_dwordx4 v[{112+4*t}:{115+4*t}], v26, s[24:25] offset:{1024*t} nt')
    e('v_sub_u32 v27, 7, v25'); e('v_min_u32 v27, v27, v25'); e('v_lshl_add_u32 v27, v24, 2, v27')
    e('s_lshl_b32 s41, s53, 6'); e('v_lshl_add_u32 v28, v27, 1, s41')
    e('v_lshrrev_b32 v29, 2, v25'); e('v_lshlrev_b32 v29, 4, v29'); e('v_lshl_add_u32 v27, v27, 5, v29')
    e('v_lshrrev_b32 v29, 3, v3'); e('v_lshlrev_b32 v29, 6, v29'); e('v_lshl_add_u32 v29, v2, 4, v29')
    e('v_and_b32 v30, 1, v3'); e('v_lshl_add_u32 v29, v30, 3, v29'); e('v_and_b32 v31, 4, v3'); e('v_add_u32 v29, v29, v31')
    e('s_lshl_b32 s41, s35, 7'); e('v_add_u32 v29, s41, v29')
    e('v_lshrrev_b32 v31, 1, v3'); e('v_lshlrev_b32 v31, 11, v31'); e('v_lshl_add_u32 v31, v2, 5, v31'); e('v_lshl_add_u32 v31, v30, 4, v31')
    e('s_lshl_b32 s41, s35, 8'); e(f's_add_u32 s41, s41, 0x{H3O:x}'); e('v_add_u32 v31, s41, v31')
    e('global_load_ushort v32, v28, s[22:23]')
    e('global_load_dword v33, v29, s[8:9]')
    e('v_and_b32 v34, 3, v1'); e('v_lshl_add_u32 v34, v34, 2, v2'); e('s_and_b32 s41, s53, 31'); e('s_lshl_b32 s41, s41, 5'); e('v_lshl_add_u32 v34, v34, 1, s41')
    e('global_load_ushort v35, v34, s[26:27]')
    e('s_lshl_b32 s41, s35, 2'); e('v_lshl_add_u32 v36, v3, 5, s41')
    e(f'v_mov_b32 v37, {DUM-RED}'); e('v_cmp_gt_u32 vcc, 16, v1'); e('v_cndmask_b32 v36, v37, v36, vcc')
    e('v_lshrrev_b32 v37, 3, v3'); e('v_lshl_add_u32 v37, v37, 5, s41')
    e('v_and_b32 v38, 3, v1'); e('v_lshlrev_b32 v38, 4, v38')
    e('v_and_b32 v39, 1, v2'); e('v_lshlrev_b32 v39, 4, v39'); e('v_lshl_add_u32 v39, v25, 5, v39')
    e('v_lshrrev_b32 v40, 1, v2'); e('v_lshl_add_u32 v39, v40, 3, v39')
    e('s_lshl_b32 s40, s53, 11'); e('s_lshl_b32 s41, s35, 8'); e('s_add_u32 s40, s40, s41'); e(f's_add_u32 s40, s40, 0x{H4O:x}'); e('v_add_u32 v39, s40, v39')
    e('v_lshlrev_b32 v40, 4, v40'); e('v_lshrrev_b32 v40, v40, s34'); e('v_lshrrev_b32 v41, 8, v40')
    e('v_lshrrev_b32 v42, 2, v1'); e('v_lshlrev_b32 v42, 11, v42'); e('v_add_u32 v42, v42, v38')
    e('s_lshl_b32 s40, s53, 6'); e(f's_add_u32 s40, s40, 0x{H4O:x}'); e('v_add_u32 v42, s40, v42')
    e('v_add_u32 v43, 0x8000, v42'); e('v_add_u32 v44, 0x10000, v42')
    for d in range(4): e(f'v_mov_b32 v{48+d}, 0x3f803f80')
    W(4)
    e('s_waitcnt vmcnt(7)')
    for u in range(2):
        for cg in range(2):
            b = BB + (u * 2 + cg) * 4
            for a in range(2):
                e(f'ds_read_b64_tr_b16 v[{b+2*a}:{b+2*a+1}], v23 offset:{a*2048+u*256+cg*32}')
    e('s_waitcnt lgkmcnt(0)')
    e(f'v_mfma_f32_16x16x32_bf16 v[80:83], v[48:51], v[{BB}:{BB+3}], 0')
    e(f'v_mfma_f32_16x16x32_bf16 v[84:87], v[48:51], v[{BB+4}:{BB+7}], 0')
    e(f'v_mfma_f32_16x16x32_bf16 v[80:83], v[48:51], v[{BB+8}:{BB+11}], v[80:83]')
    e(f'v_mfma_f32_16x16x32_bf16 v[84:87], v[48:51], v[{BB+12}:{BB+15}], v[84:87]')
    e(f'ds_write_b32 v36, v80 offset:{QP}'); e(f'ds_write_b32 v36, v84 offset:{QP+512}')
    e('s_waitcnt lgkmcnt(0)')
    e('s_barrier')
    e(f'ds_read_b128 v[52:55], v27 offset:{QP}')
    e('s_waitcnt lgkmcnt(0)')
    e('v_add_f32 v52, v52, v53'); e('v_add_f32 v54, v54, v55'); e('v_add_f32 v45, v52, v54')
    e(f'v_add_f32_dpp v45, v45, v45 row_half_mirror {D}')
    e('v_mov_b32 v60, 0x3b000000')
    stamp(9)
    if h4pre or outpre:
        e('s_cmp_lg_u32 s35, 0'); e('s_cbranch_scc1 NOH4')
        if h4pre:
            e('global_load_dword v88, v42, s[32:33] sc1'); e('global_load_dword v89, v43, s[32:33] sc1'); e('global_load_dword v90, v44, s[32:33] sc1')
        if outpre: e('global_load_ushort v91, v34, s[28:29]')
        e('NOH4:')
    e('s_mov_b64 vcc, -1')
    for k in range(hpipe):
        e('global_load_dwordx4 v[12:15], v31, s[32:33] sc1')
        e('global_load_dwordx4 v[16:19], v31, s[32:33] offset:128 sc1')
        e(f's_sleep {hdel}')
    e('HPOLL:')
    if mrep & 2: e('s_mov_b64 exec, vcc')
    e('global_load_dwordx4 v[12:15], v31, s[32:33] sc1')
    e('global_load_dwordx4 v[16:19], v31, s[32:33] offset:128 sc1')
    if mrep & 2: e('s_mov_b64 exec, -1')
    e(f's_waitcnt vmcnt({2*hpipe})')
    for k in range(8): e(f'v_xor_b32 v{64+k}, s{44+(k&3)}, v{12+k}')
    e('v_or3_b32 v72, v64, v65, v66'); e('v_or3_b32 v73, v67, v68, v69'); e('v_or3_b32 v72, v72, v70, v71')
    e('v_or_b32 v72, v72, v73'); e('v_and_b32 v72, 0xff, v72')
    e('v_cmp_ne_u32 vcc, 0, v72')
    for k in range(4): e(f'v_add_f32_dpp v{64+k}, v{64+k}, v{64+k} row_ror:8 row_mask:0xf bank_mask:0x3')
    e('s_cbranch_vccz HOK')
    e('s_sub_u32 s50, s50, 1')
    e('s_cbranch_scc0 HPOLL')
    P(4)
    e('HOK:')
    stamp(10)
    for k in range(4): e(f'v_add_f32_dpp v{64+k}, v{68+k}, v{68+k} row_ror:8 row_mask:0xf bank_mask:0xc')
    for k in range(2): e(f'v_add_f32_dpp v{64+k}, v{64+k}, v{64+k} row_shl:4 row_mask:0xf bank_mask:0x5')
    for k in range(2): e(f'v_add_f32_dpp v{64+k}, v{66+k}, v{66+k} row_shr:4 row_mask:0xf bank_mask:0xa')
    e('v_lshlrev_b32 v46, 16, v33')
    for k in range(2): e(f'v_add_f32_dpp v{64+k}, v{64+k}, v{64+k} quad_perm:[2,3,0,1] {D}')
    e('v_and_b32 v47, s48, v33')
    rbf(64, 64); rbf(65, 65)
    e('v_pk_add_f32 v[64:65], v[64:65], v[46:47]')
    e('v_cvt_pk_bf16_f32 v72, v64, v65')
    e(f'ds_write_b32 v29, v72 offset:{HB}')
    e('v_dot2_f32_bf16 v64, v72, v48, 0')
    for d in range(1, 4): e(f'v_mov_b32_dpp v{72+d}, v72 row_ror:{16-4*d} {D}')
    e('v_dot2_f32_bf16 v65, v72, v72, 0')
    def fmf(u, cg):
        b = BB + (u * 2 + cg) * 4; d = 80 + (u * 2 + cg) * 4
        e(f'v_mfma_f32_16x16x32_bf16 v[{d}:{d+3}], v[72:75], v[{b}:{b+3}], 0')
    fmf(0, 0)
    e('v_add_f32_dpp v64, v64, v64 row_ror:8 row_mask:0xf bank_mask:0x3')
    e('v_lshlrev_b32 v32, 16, v32')
    e('v_add_f32_dpp v64, v65, v65 row_ror:8 row_mask:0xf bank_mask:0xc')
    fmf(1, 0)
    e(f'v_add_f32_dpp v64, v64, v64 row_half_mirror {D}')
    fmf(0, 1)
    e(f'v_add_f32_dpp v64, v64, v64 quad_perm:[1,0,3,2] {D}')
    e('v_mov_b32 v65, v64')
    fmf(1, 1)
    e('v_permlane32_swap_b32 v64, v65'); e('v_add_f32 v64, v64, v65')
    e('v_mov_b32 v65, v64'); e('v_add_f32 v80, v80, v89'); e('v_permlane16_swap_b32 v64, v65'); e('v_add_f32 v64, v64, v65')
    e(f'ds_write_b32 v36, v80 offset:{RED}')
    e(f'ds_write_b32 v37, v64 offset:{ST}')
    e('v_add_f32 v84, v84, v93')
    e(f'ds_write_b32 v36, v84 offset:{RED+512}')
    e('s_waitcnt lgkmcnt(0)')
    P(4)
    e('s_barrier')
    e(f'ds_read_b128 v[56:59], v38 offset:{ST}')
    e(f'ds_read_b128 v[52:55], v27 offset:{RED}')
    e(f'ds_read_u16 v61, v34 offset:{HB}')
    e('s_waitcnt lgkmcnt(2)')
    e('v_pk_add_f32 v[56:57], v[56:57], v[58:59]'); e('v_add_f32 v56, v56, v57')
    e('s_waitcnt lgkmcnt(1)')
    e('v_pk_add_f32 v[52:53], v[52:53], v[54:55]')
    e(f'v_add_f32_dpp v56, v56, v56 quad_perm:[1,0,3,2] {D}')
    e('v_add_f32 v52, v52, v53')
    e(f'v_mul_f32_dpp v57, v56, v60 quad_perm:[0,0,0,0] {D}')
    e(f'v_mul_f32_dpp v58, v56, v60 quad_perm:[2,2,2,2] {D}')
    e('v_fma_f32 v58, -v57, v57, v58')
    e('v_max_f32 v58, 0, v58')
    rbf(58, 58)
    e(f'v_add_f32_dpp v52, v52, v52 row_half_mirror {D}')
    e(f'v_add_f32 v58, 0x{EPS:x}, v58'); rbf(58, 58)
    e('v_sqrt_f32 v58, v58')
    rbf(57, 57)
    rbf(58, 58)
    e('v_rcp_f32 v58, v58')
    e('v_fma_f32 v52, -v57, v45, v52')
    e('v_mul_f32 v52, v52, v58'); rbf(52, 52)
    e('v_add_f32 v52, v52, v32'); rbf(52, 52)
    e('v_max_f32 v52, 0, v52'); e('v_mul_f32 v52, v52, v52')
    e('v_cvt_pk_bf16_f32 v52, v52, v52')
    P(4)
    e('s_mov_b32 s40, 0x00ff00ff'); e('s_mov_b32 s41, s40')
    for t in range(4):
        a = 64 + 4 * t
        for d in range(4):
            s = t if d < 2 else 3 - t
            e(f'v_and_b32_dpp v{a+d}, v52, v{4+d} quad_perm:[{s},{s},{s},{s}] {D}')
        if t >= 1:
            c = '0' if t == 1 else 'v[80:83]'
            e(f'v_mfma_f32_16x16x32_bf16 v[80:83], v[{a-4}:{a-1}], v[{108+4*t}:{111+4*t}], {c}')
    e(f'v_mfma_f32_16x16x32_bf16 v[80:83], v[76:79], v[124:127], v[80:83]')
    e('v_permlane32_swap_b32 v80, v82'); e('v_permlane32_swap_b32 v81, v83')
    e(f'v_add_f32_dpp v80, v82, v80 row_ror:8 {D}'); e(f'v_add_f32_dpp v81, v83, v81 row_ror:8 {D}')
    e('v_bfi_b32 v80, v8, v40, v80'); e('v_bfi_b32 v81, v8, v41, v81')
    e('s_mov_b64 exec, s[40:41]')
    e('global_store_dwordx2 v39, v[80:81], s[32:33] sc1')
    e('s_mov_b64 exec, -1')
    stamp(11)
    e('s_cmp_lg_u32 s35, 0')
    e('s_cbranch_scc1 FIN')
    e('s_cmp_ge_u32 s53, 32')
    e('s_cbranch_scc1 FFIN')
    e('s_waitcnt lgkmcnt(0)')
    e('v_lshlrev_b32 v61, 16, v61'); e('v_lshlrev_b32 v35, 16, v35')
    e('s_mov_b32 s42, -1'); e('s_mov_b32 s43, 0xfff'); e('s_mov_b64 vcc, -1')
    for k in range(4): e(f'v_mov_b32 v{104+k}, s{44+k}')
    P(4)
    if fpre: e(f's_sleep {fpre}')
    e('FPOLL:')
    if fdel: e(f's_sleep {fdel}')
    if mrep & 4: e('s_mov_b64 exec, vcc')
    e('global_load_dwordx4 v[96:99], v42, s[32:33] sc1')
    e('global_load_dwordx4 v[100:103], v43, s[32:33] sc1')
    e('s_and_b64 exec, exec, s[42:43]')
    e('global_load_dwordx4 v[104:107], v44, s[32:33] sc1')
    e('s_mov_b64 exec, -1')
    e('s_waitcnt vmcnt(0)')
    for k in range(12): e(f'v_xor_b32 v{64+k}, s{44+(k&3)}, v{96+k}')
    e('v_or3_b32 v76, v64, v65, v66'); e('v_or3_b32 v77, v67, v68, v69'); e('v_or3_b32 v76, v76, v70, v71'); e('v_or3_b32 v77, v77, v72, v73')
    e('v_or3_b32 v76, v76, v74, v75'); e('v_or_b32 v76, v76, v77'); e('v_and_b32 v76, 0xff, v76')
    e('v_cmp_ne_u32 vcc, 0, v76')
    for k in (0, 2): e(f'v_pk_add_f32 v[{64+k}:{65+k}], v[{64+k}:{65+k}], v[{68+k}:{69+k}]')
    for k in (0, 2): e(f'v_pk_add_f32 v[{64+k}:{65+k}], v[{64+k}:{65+k}], v[{72+k}:{73+k}]')
    e('s_cbranch_vccz FOK')
    e('s_sub_u32 s50, s50, 1')
    e('s_cbranch_scc0 FPOLL')
    P(4)
    e('FOK:')
    stamp(12)
    e('v_permlane32_swap_b32 v64, v66'); e('v_permlane32_swap_b32 v65, v67')
    e('v_pk_add_f32 v[64:65], v[64:65], v[66:67]')
    e('s_mov_b32 s40, 0x000f000f'); e('s_mov_b32 s41, s40')
    e('v_permlane16_swap_b32 v64, v65')
    e('v_add_f32 v64, v64, v65')
    e(f'v_add_f32_dpp v64, v64, v64 row_ror:8 {D}'); e(f'v_add_f32_dpp v64, v64, v64 row_ror:4 {D}')
    rbf(64, 64); e('v_add_f32 v64, v64, v35'); rbf(64, 64); e('v_add_f32 v64, v64, v61')
    e('v_cvt_pk_bf16_f32 v64, v64, v64')
    e('s_mov_b64 exec, s[40:41]')
    e('global_store_short v34, v64, s[28:29]')
    e('s_cmp_lg_u32 s53, 0')
    e('s_cbranch_scc1 FFIN')
    e('s_mov_b64 exec, 1')
    e('v_mov_b32 v65, 0'); e('v_mov_b32 v66, s34')
    e('global_store_dword v65, v66, s[32:33]')
    e('FFIN:')
    stamp(13)
    e('s_branch FIN')
    L2 = []
    for l in L:
        if l.startswith(';@W'):
            site = int(l[3:])
            L2.append('s_mov_b64 exec, 0')
            for k, nm in enumerate(pads[site]):
                L2.append(f's_cmp_eq_u32 s35, {k}'); L2.append(f's_cbranch_scc1 {nm}')
            L2.append(f'WB{site}:'); L2.append('s_mov_b64 exec, -1')
        else: L2.append(l)
    out, npad = pad(L2)
    ad = sizes(out)
    print('size', ad[-1], 'nops', npad, {l.strip()[:-1]: ad[i] for i, l in enumerate(out) if l.strip().endswith(':')})
    out.append('.fill 700, 4, 0xbf810000')
    return wrap('\n'.join(out), 256, 512, LDS, 128), npad

if __name__ == '__main__':
    for spec in sys.argv[1:]:
        name, _, kw = spec.partition(':')
        kw = dict((k, int(v)) for k, v in (p.split('=') for p in kw.split(',') if p))
        s, n = gen(**kw); open(name + '.s', 'w').write(s)
```

```python
import sys
from asmlib import *

H1C, H2LO, H2O, H3O, H4O, H1O = 0x1000, 0x30000, 0x40000, 0xA0000, 0x70000, 0x200000
COPYB = 0x100000
QP, QF, MX, RED, ST, HB, DUM, WB = 0, 4352, 4608, 5120, 7168, 7424, 8448, 16384
LDS = WB + 65536
TAGC = 0x9E3779B1
LOG2E = 0x3FB8AA3B
SCALE = 0x3DB504F3
EPS = 0x3727C5AC

def gen(hsl=0, now2=0, h3c=1, qa=0, qd=0, early=0, nqg=3, pre=0, lt=0, xo=0, wpf=0, wsel=1, fwait=1, stamps=0, maxtry=1 << 16, dual=24, cpf=1, warm=7, kpre=0, qpos=2, qsleep=4, ptouch=1, pdirty=1, w2pf=1, kbar=1, forcefb=0, osleep=0, hdel=0, fdel=0, nq=0, vpre=0, late=1, mrep=7, spf=3, h4pre=0, outpre=0, ncopy=8, fpre=0, hpipe=0):
    L = []
    e = L.append
    D = 'row_mask:0xf bank_mask:0xf'
    SV = 22
    def stamp(k):
        if stamps:
            e('s_memrealtime s[96:97]'); e('s_waitcnt lgkmcnt(0)'); e(f'v_writelane_b32 v{SV}, s96, {k}')
    def wave_sum(v, sdst, op='add'):
        for r in (8, 4, 2, 1): e(f'v_{op}_f32_dpp v{v}, v{v}, v{v} row_ror:{r} {D}')
        e(f'v_{op}_f32_dpp v{v}, v{v}, v{v} row_bcast:15 row_mask:0xa bank_mask:0xf')
        e(f'v_{op}_f32_dpp v{v}, v{v}, v{v} row_bcast:31 row_mask:0xc bank_mask:0xf')
        e(f'v_readlane_b32 s{sdst}, v{v}, 63')
    def rbf(d, s): e(f'v_cvt_pk_bf16_f32 v{d}, 0, v{s}')
    def reduce8(rd, st=512):
        for k in range(4): e(f'ds_read_b128 v[{48+4*k}:{51+4*k}], v{rd} offset:{QP+st*k}')
    def reduce8b(dp='row_ror:8'):
        e('s_waitcnt lgkmcnt(2)')
        e('v_pk_add_f32 v[48:49], v[48:49], v[52:53]'); e('v_pk_add_f32 v[50:51], v[50:51], v[54:55]')
        e('s_waitcnt lgkmcnt(0)')
        e('v_pk_add_f32 v[56:57], v[56:57], v[60:61]'); e('v_pk_add_f32 v[58:59], v[58:59], v[62:63]')
        e('v_pk_add_f32 v[48:49], v[48:49], v[56:57]'); e('v_pk_add_f32 v[50:51], v[50:51], v[58:59]')
        for k in range(4): e(f'v_add_f32_dpp v{48+k}, v{48+k}, v{48+k} {dp} {D}')
    KB, VB, BB = 96, 64, 96
    def ld(reg, base, first):
        if not first: e('v_add_u32 v12, 0x2000, v12')
        e(f'global_load_dwordx4 v[{reg}:{reg+3}], v12, {base} nt')
    def dma(q):
        e(f's_xor_b32 m0, s62, {q << 10}' if q else 's_mov_b32 m0, s62')
        e(f'global_load_lds_dwordx4 v{16+q}, s[20:21] nt')
    pads = {1: [], 2: [], 4: []}
    def P(site):
        if warm & site:
            nm = f'PAD{site}_{len(pads[site])}'; pads[site].append(nm)
            e(nm + ':'); e(f's_cbranch_execz WB{site}')
    def W(site):
        if warm & site: e(f';@W{site}')
    def qtry():
        e('s_load_dwordx16 s[64:79], s[98:99], 0')
        e('s_load_dwordx16 s[80:95], s[98:99], 64')
        e('s_load_dwordx16 s[8:23], s[98:99], 4096')
        e('s_load_dwordx8 s[24:31], s[98:99], 4160')
        e('s_load_dwordx8 s[56:63], s[98:99], 4192')
        e('s_add_u32 s98, s98, 256'); e('s_addc_u32 s99, s99, 0')

    e('s_cmp_ge_u32 s2, 256')
    e('s_cbranch_scc1 END')
    e('s_load_dwordx16 s[8:23], s[0:1], 0')
    e('s_load_dwordx2 s[32:33], s[0:1], 96')
    e('s_load_dwordx8 s[24:31], s[0:1], 64')
    if stamps: e('s_memrealtime s[96:97]'); e(f'v_mov_b32 v{SV}, 0')
    e('s_lshr_b32 s39, s2, 3')
    e('s_and_b32 s40, s39, 3')
    if cpf:
        e('s_getpc_b64 s[54:55]')
        e('s_lshl_b32 s41, s40, 7')
        e('s_add_u32 s54, s54, s41'); e('s_addc_u32 s55, s55, 0')
        e('v_lshlrev_b32 v10, 9, v0')
        e('v_mov_b32 v11, s55')
        e('v_add_co_u32 v10, vcc, s54, v10'); e('v_addc_co_u32 v11, vcc, 0, v11, vcc')
        e('v_cmp_gt_u32 vcc, 18, v0')
        e('s_and_saveexec_b64 s[56:57], vcc')
        e('s_cbranch_execz NOPF')
        e('global_load_dword v30, v[10:11], off')
        e('NOPF:')
        e('s_mov_b64 exec, -1')
    e('v_lshrrev_b32 v8, 6, v0')
    e('v_and_b32 v1, 63, v0')
    e('v_readfirstlane_b32 s35, v8')
    e('s_and_b32 s38, s2, 7')
    e('s_lshl_b32 s36, s38, 2')
    e('s_add_u32 s36, s36, s40')
    e('s_lshr_b32 s37, s39, 2')
    e('v_lshlrev_b32 v9, 4, v1')
    xa = 4 - xo; TA = 8 if wpf else 0
    if nqg == 2: xa = 6 - xo; assert lt
    def wdma(t, a, x, wb='s[16:17]'):
        g, hb = t & 3, t >> 2
        e(f's_add_u32 m0, s62, {t << 10}')
        if t: e(f'v_xor_b32 v{x}, 0x{g*32 | g*8192 | hb << 17:x}, v{a}')
        e(f'global_load_lds_dwordx4 v{x if t else a}, {wb} nt')
    if qa: xa = 3
    if nqg == 3: e('s_mul_i32 s41, s37, 3')
    if qa:
        e('s_add_u32 s42, s37, 1'); e('s_lshr_b32 s42, s42, 1'); e('s_min_u32 s42, s42, 2'); e('s_add_u32 s41, s41, s42')
        e('s_cmp_eq_u32 s37, 7'); e(f's_cselect_b32 s41, 26, s41')
    elif nqg == 2:
        e('s_sub_u32 s42, s37, 4'); e('s_max_i32 s42, s42, 0'); e(f's_mul_i32 s42, s42, {1+xo}'); e('s_lshl1_add_u32 s41, s37, s42')
        if xo != xa: e('s_cmp_eq_u32 s37, 7'); e(f's_cselect_b32 s41, {29-xa}, s41')
    elif xo == 2:
        e('s_sub_u32 s42, s37, 4'); e('s_max_i32 s42, s42, 0'); e('s_lshl1_add_u32 s41, s42, s41')
    else:
        if xo:
            e('s_sub_u32 s42, s37, 4'); e('s_max_i32 s42, s42, 0'); e('s_add_u32 s41, s42, s41')
        e('s_cmp_eq_u32 s37, 7'); e(f's_cselect_b32 s41, {25+xo}, s41')
    e('s_lshl_b32 s41, s41, 3'); e('s_add_u32 s41, s41, s35'); e('s_lshl_b32 s41, s41, 10')
    e('s_lshl_b32 s42, s36, 20'); e('s_add_u32 s41, s41, s42'); e('s_add_u32 s41, s41, 0xC0000')
    e('v_add_u32 v13, s41, v9')
    e('v_mov_b32 v12, v13')
    e('v_lshrrev_b32 v2, 4, v1')
    e('v_and_b32 v3, 15, v1')
    e('s_cmp_lt_u32 s37, 4')
    e('s_cbranch_scc0 F_NQ')
    e('s_lshr_b32 s40, s37, 1'); e('s_lshl_b32 s40, s40, 3'); e('s_add_u32 s40, s40, s35'); e('s_lshl_b32 s40, s40, 5')
    e('v_lshrrev_b32 v10, 3, v1'); e('v_lshl_add_u32 v10, v10, 2, s40')
    e('s_lshl_b32 s41, s36, 1'); e('s_and_b32 s42, s37, 1'); e('s_add_u32 s41, s41, s42'); e('s_lshl_b32 s41, s41, 7')
    e('v_and_b32 v11, 0x70, v9'); e('v_lshl_add_u32 v11, v10, 13, v11'); e('v_add_u32 v11, s41, v11')
    e('v_lshlrev_b32 v10, 1, v10')
    e('s_waitcnt lgkmcnt(0)')
    e('global_load_dwordx4 v[16:19], v9, s[8:9]')
    e('global_load_dwordx2 v[24:25], v10, s[8:9]')
    for t in range(4):
        if t: e('v_add_u32 v11, 0x2000, v11')
        e(f'global_load_dwordx4 v[{64+4*t}:{67+4*t}], v11, s[14:15] nt')
    e('s_load_dword s34, s[32:33], 0')
    e('s_lshl_b32 s40, s36, 2'); e('s_add_u32 s40, s40, s37'); e('s_lshl_b32 s54, s40, 11'); e(f's_add_u32 s54, s54, 0x{H1O:x}')
    e('s_lshl_b32 s55, s40, 8'); e(f's_add_u32 s55, s55, 0x{H1C:x}')
    if ptouch:
        e('v_lshlrev_b32 v10, 7, v3'); e('v_add_u32 v10, s54, v10')
        e('s_cmp_lg_u32 s35, 0'); e('s_cbranch_scc1 NOTOUCH')
        e('global_load_dword v29, v10, s[32:33]')
        e('NOTOUCH:')
    if kpre:
        e('s_barrier')
        for t in range(kpre): ld(KB + 16 + 4 * t, 's[10:11]', t == 0)
    e('s_branch F_C')
    e('F_NQ:')
    e('s_waitcnt lgkmcnt(0)')
    if late: e('s_load_dword s34, s[32:33], 0')
    if spf:
        e('s_and_b32 s40, s39, 15')
        e('s_cmp_eq_u32 s35, 0'); e('s_cbranch_scc0 SPF1')
        if spf & 8: e('s_waitcnt lgkmcnt(0)')
        if spf & 1:
            e('s_lshl_b32 s41, s38, 4'); e('s_add_u32 s41, s41, s40'); e('s_lshl_b32 s41, s41, 15'); e('s_add_u32 s41, s41, 0x180')
            e('v_lshrrev_b32 v10, 1, v1'); e('v_lshlrev_b32 v10, 10, v10'); e('v_and_b32 v11, 1, v1'); e('v_lshl_add_u32 v10, v11, 6, v10'); e('v_add_u32 v10, s41, v10')
            e('global_load_dword v29, v10, s[16:17]')
        e('SPF1:')
        if spf & 6:
            e('s_cmp_eq_u32 s35, 1'); e('s_cbranch_scc0 SPF2')
            e('s_lshl_b32 s41, s38, 22'); e(f's_mul_i32 s42, s40, {1024*nqg}'); e('s_add_u32 s41, s41, s42'); e('s_and_b32 s42, s40, 8'); e(f's_mul_i32 s42, s42, {4096 if qa else 1024*nqg}')
            e('s_add_u32 s41, s41, s42'); e(f's_add_u32 s41, s41, {0x100000 + 0xC0000 + (nqg + qa) * 8192}')
            e(f'v_min_u32 v10, {16*nqg-1}, v1'); e('v_lshl_add_u32 v10, v10, 6, s41')
            if spf & 2: e('global_load_dword v29, v10, s[10:11]')
            if spf & 4: e('global_load_dword v28, v10, s[12:13]')
            e('SPF2:')
    if late == 2: e('s_cmp_lt_u32 s37, 6'); e('s_cbranch_scc0 NLATE')
    if late: e('s_waitcnt lgkmcnt(0)')
    e('NLATE:')
    for t in range(3): ld(KB + 16 + 4 * t, 's[10:11]', t == 0)
    if not late: e('s_load_dword s34, s[32:33], 0')
    for t in range(xo): ld(KB + 4 * t, 's[10:11]', False)
    if xa > xo:
        e('s_cmp_lt_u32 s37, 6')
        e('s_cbranch_scc1 F_C')
        for t in range(xo, xa): ld(KB + 4 * t, 's[10:11]', False)
    e('F_C:')
    if stamps: e(f'v_writelane_b32 v{SV}, s96, 0')
    e('s_mov_b32 s48, 0xffff0000'); e(f's_mov_b32 s50, {maxtry}')
    e('v_and_b32 v14, 1, v1'); e('v_lshlrev_b32 v14, 4, v14'); e('v_mov_b32 v15, 0xffff'); e('v_lshlrev_b32 v14, v14, v15')
    e('v_bfe_u32 v15, v1, 1, 2')
    for d in range(4):
        e(f'v_cmp_eq_u32 vcc, {d}, v15'); e(f'v_cndmask_b32 v{4+d}, 0, v14, vcc')
    e('v_and_b32 v14, 1, v2'); e('v_lshlrev_b32 v14, 4, v14'); e('v_lshl_add_u32 v14, v3, 5, v14')
    e('v_mov_b32 v8, 0xff')
    def csetup():
        e('s_lshl_b32 s40, s35, 9'); e('s_lshr_b32 s41, s35, 2'); e('s_lshl_b32 s42, s41, 7'); e('s_add_u32 s40, s40, s42'); e('v_add_u32 v14, s40, v14')
        e('s_movk_i32 s43, 0x880'); e('s_mov_b64 s[100:101], s[12:13]')
        e('v_and_b32 v10, 3, v1'); e('v_lshl_add_u32 v10, v2, 2, v10'); e('v_lshlrev_b32 v10, 5, v10'); e('v_and_b32 v15, 4, v1'); e('v_lshl_add_u32 v10, v15, 2, v10')
        e('v_lshrrev_b32 v15, 3, v3'); e('v_mad_u32_u24 v15, v15, s43, v10')
        e('s_lshl_b32 s40, s36, 3'); e('s_add_u32 s40, s40, s37'); e('s_lshl_b32 s52, s40, 9')
        e('s_lshl_b32 s40, s36, 13'); e('s_bfe_u32 s41, s35, 0x10001'); e('s_lshl_b32 s41, s41, 11'); e('s_add_u32 s40, s40, s41'); e('s_and_b32 s41, s35, 1'); e('s_lshl_b32 s41, s41, 7')
        e('s_add_u32 s40, s40, s41'); e(f's_add_u32 s40, s40, 0x{H1O:x}'); e('s_add_u32 s98, s32, s40'); e('s_addc_u32 s99, s33, 0')
        e('v_lshlrev_b32 v20, 4, v3')
        e('s_lshl_b32 s40, s35, 2'); e(f's_add_u32 s40, s40, {MX}'); e('v_mov_b32 v21, s40')
    if early:
        e('v_mov_b32 v26, v14')
        csetup(); W(1)
    e('s_cmp_lt_u32 s37, 4')
    e('s_cbranch_scc0 F_D')
    nk0 = kpre
    e(f's_waitcnt vmcnt({5+nk0})')
    for k in range(4):
        e(f'v_lshlrev_b32 v{48+2*k}, 16, v{16+k}'); e(f'v_and_b32 v{49+2*k}, s48, v{16+k}')
    e('v_pk_add_f32 v[56:57], v[48:49], v[50:51]'); e('v_pk_add_f32 v[58:59], v[52:53], v[54:55]')
    e('v_pk_add_f32 v[56:57], v[56:57], v[58:59]'); e('v_add_f32 v56, v56, v57')
    wave_sum(56, 40)
    e('v_mov_b32 v60, 0x3b000000')
    e('v_mul_f32 v62, s40, v60')
    for k in range(0, 8, 2): e(f'v_pk_add_f32 v[{48+k}:{49+k}], v[{48+k}:{49+k}], v[62:63] op_sel_hi:[1,0] neg_lo:[0,1] neg_hi:[0,1]')
    e('v_pk_mul_f32 v[56:57], v[48:49], v[48:49]')
    for k in range(2, 8, 2): e(f'v_pk_fma_f32 v[56:57], v[{48+k}:{49+k}], v[{48+k}:{49+k}], v[56:57]')
    e('v_add_f32 v56, v56, v57')
    wave_sum(56, 40)
    rbf(57, 62)
    e('v_mul_f32 v58, s40, v60'); rbf(58, 58)
    e(f'v_add_f32 v58, 0x{EPS:x}, v58'); rbf(58, 58)
    e('v_sqrt_f32 v58, v58'); rbf(58, 58)
    e('v_rcp_f32 v58, v58')
    e(f's_waitcnt vmcnt({4+nk0})')
    e('v_lshlrev_b32 v48, 16, v24'); e('v_and_b32 v49, s48, v24'); e('v_lshlrev_b32 v50, 16, v25'); e('v_and_b32 v51, s48, v25')
    for k in range(4): e(f'v_sub_f32 v{48+k}, v{48+k}, v57')
    for k in range(4): rbf(48 + k, 48 + k)
    for k in range(4): e(f'v_mul_f32 v{48+k}, v{48+k}, v58')
    for k in range(4): e(f'v_cvt_pk_bf16_f32 v{48+k}, v{48+k}, v{48+k}')
    for t in range(4):
        for d in range(4): e(f'v_and_b32 v{32+4*t+d}, v{48+t}, v{4+d}')
    e('s_lshl_b32 s40, s35, 9'); e('s_lshr_b32 s41, s35, 1'); e('s_lshl_b32 s41, s41, 6'); e('s_add_u32 s40, s40, s41'); e(f'v_add_u32 v10, s40, v{26 if early else 14}')
    e('v_bfe_u32 v11, v1, 2, 2'); e('v_and_b32 v16, 0x30, v9'); e('v_lshl_add_u32 v16, v2, 6, v16')
    e('v_lshl_add_u32 v17, v11, 8, v16'); e('v_add_u32 v17, s54, v17'); e('v_add_u32 v18, s55, v16')
    e('v_mul_u32_u24 v11, 0x440, v11'); e('v_add_u32 v11, v11, v16')
    e('s_mov_b32 s40, 0x00ff00ff'); e('s_mov_b32 s41, 0xff00ff00')
    for t in range(4):
        e(f's_waitcnt vmcnt({3-t+nk0})')
        e(f'v_mfma_f32_16x16x32_bf16 v[48:51], v[{32+4*t}:{35+4*t}], v[{64+4*t}:{67+4*t}], ' + ('0' if t == 0 else 'v[48:51]'))
    e('s_mov_b64 exec, s[40:41]')
    e(f'ds_write_b128 v10, v[48:51] offset:{QP}')
    e('s_mov_b64 exec, -1')
    e('s_waitcnt lgkmcnt(0)')
    stamp(1)
    e('s_cmp_lg_u32 s35, 7')
    e('s_barrier')
    e('s_cbranch_scc1 L_A')
    reduce8(11, 256)
    e(f's_add_u32 s42, s34, 0x{TAGC:x}')
    e('s_and_b32 s44, s42, 0xff'); e('s_bfe_u32 s45, s42, 0x80008'); e('s_bfe_u32 s46, s42, 0x80010'); e('s_lshr_b32 s47, s42, 24')
    e('s_mov_b32 s40, 0x000f000f'); e('s_mov_b32 s41, s40')
    reduce8b()
    for k in range(4): e(f'v_add_f32_dpp v{48+k}, v{48+k}, v{48+k} row_ror:4 {D}')
    for k in range(4): e(f'v_bfi_b32 v{48+k}, v8, s{44+k}, v{48+k}')
    e('global_store_dwordx4 v17, v[48:51], s[32:33]')
    if ncopy == 8: e('global_store_dwordx4 v17, v[48:51], s[32:33] offset:1024')
    e('s_mov_b64 exec, s[40:41]')
    e('global_store_dwordx4 v18, v[48:51], s[32:33] sc1')
    e('s_mov_b64 exec, -1')
    stamp(4)
    e('L_A:')
    e('s_barrier')
    for t in range(kpre, nqg): ld(KB + 16 + 4 * t, 's[10:11]', t == 0)
    if qa:
        e('s_bitcmp1_b32 s37, 0'); e('s_cbranch_scc1 F_D'); ld(KB, 's[10:11]', False)
    e('F_D:')
    stamp(14)
    if not early: csetup()
    e('v_mov_b32 v12, v13')
    if lt: e('v_mov_b32 v23, 0')
    if not early: W(1)
    e('s_waitcnt lgkmcnt(0)')
    e(f's_add_u32 s34, s34, 0x{TAGC:x}')
    e('s_and_b32 s44, s34, 0xff'); e('s_bfe_u32 s45, s34, 0x80008'); e('s_bfe_u32 s46, s34, 0x80010'); e('s_lshr_b32 s47, s34, 24')
    if pdirty:
        e('s_cmp_lg_u32 s35, 7'); e('s_cbranch_scc1 NOPD')
        e('s_not_b32 s40, s34')
        for k in range(4): e(f'v_mov_b32 v{48+k}, s40')
        e(f's_add_u32 s42, s52, 0x{H2O:x}'); e('v_add_u32 v10, s42, v9')
        e('s_lshr_b32 s42, s52, 5'); e(f's_add_u32 s42, s42, 0x{H2LO:x}'); e('v_mov_b32 v11, s42')
        e('v_cmp_gt_u32 vcc, 32, v1'); e('v_cndmask_b32 v10, v11, v10, vcc')
        e('s_mov_b32 exec_hi, 1')
        e('global_store_dwordx4 v10, v[48:51], s[32:33]')
        e('s_mov_b64 exec, -1')
        e('NOPD:')
    e(f's_mov_b32 s49, {0 if forcefb else ncopy - 1}')
    e('s_cmp_lt_u32 s37, 4')
    if kbar == 2: e('s_cbranch_scc1 V_NQ')
    if kbar: e('s_barrier')
    def vq(a, b):
        for t in range(a, b): ld(VB + 16 + 4 * t, 's[100:101]', t == 0)
    e('s_mov_b32 s51, 0')
    if nq:
        e('s_cbranch_scc0 V_NQ')
        e('s_cmp_lt_u32 s35, 4')
        e('s_cbranch_scc0 V_NQ')
        vq(0, vpre)
        e(f's_mov_b32 s51, {nq}')
        e('s_branch FETCH2')
    e('V_NQ:')
    vq(0, nqg)
    if qa:
        e('s_and_b32 s40, s37, 5'); e('s_cbranch_scc1 V_QE'); ld(VB, 's[12:13]', False); e('V_QE:')
    e('s_cmp_lt_u32 s37, 4')
    e('s_cbranch_scc1 FETCH')
    vq(nqg, 3)
    for t in range(xo): ld(VB + 4 * t, 's[12:13]', False)
    e('s_cmp_lt_u32 s37, 6')
    e('s_cbranch_scc0 V_A')
    e('s_lshl_b32 s62, s35, 13'); e(f's_add_u32 s62, s62, {WB}')
    e('s_lshr_b32 s40, s35, 2'); e('s_and_b32 s41, s35, 3')
    e('s_lshl_b32 s42, s38, 19'); e('s_lshl_b32 s43, s40, 18'); e('s_add_u32 s42, s42, s43')
    e('s_lshl_b32 s43, s41, 15'); e('s_add_u32 s42, s42, s43'); e('s_and_b32 s43, s39, 7'); e('s_lshl_b32 s43, s43, 7'); e('s_add_u32 s42, s42, s43')
    e('v_lshrrev_b32 v16, 3, v1'); e('v_and_b32 v17, 0x70, v9'); e('v_lshl_add_u32 v16, v16, 10, v17'); e(f'v_add_u32 v{23 if lt else 16}, s42, v16')
    if not lt:
        for t in range(8): wdma(t, 16, 17)
    for t in range(pre): wdma(t, 23, 31)
    e('s_branch FETCH')
    e('V_A:')
    for t in range(xo, xa):
        ld(VB + 4 * t, 's[12:13]', False)
    if wpf:
        e('s_and_b32 s40, s39, 3'); e('s_lshl_b32 s40, s40, 3'); e('s_add_u32 s40, s40, s35'); e('s_lshl_b32 s40, s40, 12')
        e('s_and_b32 s41, s39, 4'); e('s_lshl_b32 s41, s41, 16'); e('s_add_u32 s40, s40, s41')
        e('s_lshl_b32 s41, s38, 19'); e('s_add_u32 s40, s40, s41')
        if lt:
            if wpf == 1:
                e(f's_add_u32 s40, s40, {1 << 17}'); e('v_lshl_add_u32 v23, v1, 6, s40')
            else:
                nlan = 64 // lt
                e(f'v_and_b32 v16, {nlan-1}, v1'); e('v_lshl_add_u32 v16, v16, 6, s40'); e(f'v_and_b32 v17, {nlan}, v1'); e(f'v_lshl_add_u32 v23, v17, {17 - nlan.bit_length() + 1}, v16')
        elif wpf == 1:
            if wsel: e(f's_add_u32 s40, s40, {wsel << 17}')
            e('v_lshl_add_u32 v16, v1, 6, s40')
            e('s_mov_b64 exec, 0xff')
        else:
            e('v_and_b32 v16, 7, v1'); e('v_lshl_add_u32 v16, v16, 6, s40'); e('v_and_b32 v17, 8, v1'); e('v_lshl_add_u32 v16, v17, 14, v16')
            e('s_mov_b64 exec, 0xffff')
        if pre:
            nl = (64 // lt) * (2 if wpf == 2 else 1)
            if nl < 64: e(f's_mov_b64 exec, {hex((1 << nl) - 1)}')
            for t in range(pre): e(f'global_load_dword v124, v23, s[16:17] offset:{4096//lt*t}')
            e('s_mov_b64 exec, -1')
        if not lt:
            for t in range(8): e(f'global_load_dword v124, v16, s[16:17] offset:{512*t}')
            e('s_mov_b64 exec, -1')
    e('FETCH:')
    if qd: e('s_mov_b64 s[100:101], s[16:17]')
    stamp(15)
    e('s_cmp_lt_u32 s35, 4')
    e('s_cbranch_scc0 QDONE')
    e('FETCH2:')
    qtry()
    e('s_lshl_b32 s42, s35, 6'); e('v_mov_b32 v11, s42')
    QA = list(range(64, 96, 2)); QB = list(range(8, 32, 2)) + list(range(56, 64, 2))
    e('FCHK:')
    e('s_waitcnt lgkmcnt(0)')
    for k, r in enumerate(QA + QB): e(f's_xor_b64 s[{r}:{r+1}], s[{r}:{r+1}], s[{44+2*(k&1)}:{45+2*(k&1)}]')
    e('s_or_b64 s[40:41], s[64:65], s[66:67]')
    for k, r in enumerate((QA + QB)[2:]):
        e(f's_or_b64 s[40:41], s[40:41], s[{r}:{r+1}]')
        if k < 16: e(f'v_mov_b64 v[{32+2*k}:{33+2*k}], s[{QA[k]}:{QA[k]+1}]')
        else: e(f'v_pk_add_f32 v[{2*k}:{1+2*k}], s[{QB[k-16]}:{QB[k-16]+1}], v[{2*k}:{1+2*k}]')
    e('s_or_b32 s40, s40, s41'); e('s_and_b32 s40, s40, 0xff')
    if forcefb: e('s_cmp_eq_u32 s49, 0')
    e('s_cbranch_scc0 FOKQ')
    e('s_sub_u32 s49, s49, 1')
    e('s_cbranch_scc1 QFB')
    if qsleep: e(f's_sleep {qsleep}')
    qtry()
    if nq:
        e('s_sub_u32 s51, s51, 1'); e('s_cselect_b32 s51, 0, s51'); e('s_cbranch_scc1 FCHK')
        e('s_cmp_eq_u32 s51, 0'); e('s_cbranch_scc0 FCHK')
        vq(vpre, 3)
    e('s_branch FCHK')
    P(1)
    e('FOKQ:')
    for k in (14, 15): e(f'v_pk_add_f32 v[{32+2*k}:{33+2*k}], s[{QB[k]}:{QB[k]+1}], v[{32+2*k}:{33+2*k}]')
    e('s_mov_b64 exec, 1')
    for q in range(4):
        for k in range(4 * q, 4 * q + 4): e(f'v_cvt_pk_bf16_f32 v{32+k}, v{32+2*k}, v{33+2*k}')
        e(f'ds_write_b128 v11, v[{32+4*q}:{35+4*q}] offset:{QF+16*q}')
    e('s_mov_b64 exec, -1')
    if nq:
        e('s_cmp_eq_u32 s51, 0'); e('s_cbranch_scc1 QDONE')
        vq(vpre, 3)
    e('QDONE:')
    if qd:
        e('s_cmp_lt_u32 s37, 4'); e('s_cbranch_scc1 QD_C')
        e('s_cmp_lt_u32 s37, 6'); e('s_cbranch_scc0 QD_A')
        e('s_lshl_b32 s62, s35, 13'); e(f's_add_u32 s62, s62, {WB}')
        for t in range(qd): wdma(t, 23, 31, 's[100:101]')
        e('s_branch QD_C')
        e('QD_A:')
        if wpf:
            nl = (64 // lt) * (2 if wpf == 2 else 1)
            if nl < 64: e(f's_mov_b64 exec, {hex((1 << nl) - 1)}')
            for t in range(qd): e(f'global_load_dword v124, v23, s[100:101] offset:{4096//lt*t}')
            e('s_mov_b64 exec, -1')
        e('QD_C:')
        pre = qd
    if stamps:
        e(f'v_readlane_b32 s40, v{SV}, 0'); e('s_add_u32 s41, s49, 1'); e('s_mul_i32 s41, s41, 100'); e('s_add_u32 s40, s40, s41'); e(f'v_writelane_b32 v{SV}, s40, 2')
    e(f'v_mov_b32 v63, 0x{LOG2E:x}')
    for k in (52, 53, 54, 55, 61) + ((60,) if nqg == 2 else ()): e(f'v_mov_b32 v{k}, 0xff800000')
    e('v_and_b32 v10, 0x70, v9'); e('v_lshl_add_u32 v10, v2, 7, v10')
    e(f's_add_u32 s42, s52, 0x{H2O:x}'); e('v_add_u32 v10, s42, v10'); e(f'v_add_u32 v11, 0x{COPYB:x}, v10')
    e('s_lshr_b32 s42, s52, 5'); e(f's_add_u32 s42, s42, 0x{H2LO:x}')
    e('v_mov_b32 v16, s42'); e(f'v_add_u32 v17, 0x{COPYB:x}, v16')
    e('v_and_b32 v18, 7, v1'); e('v_lshlrev_b32 v18, 2, v18'); e('v_and_b32 v19, 8, v1'); e('v_lshlrev_b32 v19, 1, v19')
    e('s_mov_b32 s40, 0x0f0f0f0f'); e('s_mov_b32 s41, s40'); e('s_mov_b32 s42, 0x00ff00ff'); e('s_mov_b32 s43, s42')
    e('s_cmp_lt_u32 s37, 4')
    e('s_waitcnt lgkmcnt(0)')
    for k in range(36, 40): e(f'v_mov_b32 v{k}, s34')
    stamp(3)
    e('s_barrier')
    e(f'ds_read_b128 v[48:51], v20 offset:{QF}')
    e('s_cbranch_scc0 QSK')
    if qa:
        e('s_waitcnt vmcnt(4)'); e('s_bitcmp1_b32 s37, 0'); e('s_cbranch_scc0 QSK')
    e(f's_waitcnt vmcnt({nqg})')
    e('QSK:')
    TO = 8
    if lt: TO = pre; TA = pre if wpf else 0
    e(f's_waitcnt vmcnt({min(2*xo+3+TO, 2*xa+3+TA)}) lgkmcnt(0)')
    e('s_load_dwordx16 s[8:23], s[0:1], 0'); e('s_load_dwordx8 s[24:31], s[0:1], 64')
    def dots(lst):
        for k in range(4):
            for r, kb in lst: e(f'v_dot2_f32_bf16 v{r}, v{kb+k}, v{48+k}, ' + ('0' if k == 0 else f'v{r}'))
    base = [(58 + t, KB + 16 + 4 * t) for t in range(3)]; ext = [(52 + t, KB + 4 * t) for t in range(4)]
    com = (xo == xa and TA == TO)
    osep = (xo or nqg < 3)
    e(f's_cmp_lt_u32 s37, {4 if osep else 6}')
    dots(base[:nqg])
    if qa:
        e('s_cbranch_scc0 SMA')
        e('s_and_b32 s63, s37, 5'); e('s_cbranch_scc1 SMX')
        dots(ext[:1])
        e('s_branch SMX')
        e('SMA:')
    else: e('s_cbranch_scc1 SMX')
    if osep and not com:
        e('s_cmp_lt_u32 s37, 6')
        e('s_cbranch_scc0 SMA')
        e(f's_waitcnt vmcnt({xo+3+TO})')
        dots(base[nqg:] + ext[:xo])
        e('s_branch SMX')
        e('SMA:')
    e(f's_waitcnt vmcnt({xa+3+TA})')
    dots(base[nqg:] + ext[:xa])
    e('SMX:')
    P(1)
    e('s_nop 1')
    for r in (58, 52):
        e(f'v_add_f32_dpp v{r}, v{r}, v{r} row_ror:8 row_mask:0xf bank_mask:0x3')
        e(f'v_add_f32_dpp v{r+1}, v{r+1}, v{r+1} row_ror:8 row_mask:0xf bank_mask:0x3')
    for r in (58, 52):
        e(f'v_add_f32_dpp v{r}, v{r+2}, v{r+2} row_ror:8 row_mask:0xf bank_mask:0xc')
        e(f'v_add_f32_dpp v{r+1}, v{r+3}, v{r+3} row_ror:8 row_mask:0xf bank_mask:0xc')
    for r in (58, 52): e(f'v_add_f32_dpp v{r}, v{r}, v{r} row_shl:4 row_mask:0xf bank_mask:0x5')
    for r in (58, 52): e(f'v_add_f32_dpp v{r}, v{r+1}, v{r+1} row_shr:4 row_mask:0xf bank_mask:0xa')
    for r in (58, 52): e(f'v_add_f32_dpp v{r}, v{r}, v{r} quad_perm:[1,0,3,2] {D}')
    for r in (58, 52): e(f'v_add_f32_dpp v{r}, v{r}, v{r} quad_perm:[2,3,0,1] {D}')
    rbf(58, 58); rbf(52, 52); e(f'v_mul_f32 v58, 0x{SCALE:x}, v58'); e(f'v_mul_f32 v52, 0x{SCALE:x}, v52'); rbf(58, 58); rbf(52, 52)
    e('v_max_f32 v54, v52, v58')
    e(f'v_max_f32_dpp v54, v54, v54 row_ror:8 {D}'); e(f'v_max_f32_dpp v54, v54, v54 row_ror:4 {D}')
    e('v_mov_b32 v53, v54'); e('v_permlane32_swap_b32 v53, v54'); e('v_max_f32 v54, v53, v54')
    e('v_mov_b32 v53, v54'); e('v_permlane16_swap_b32 v53, v54'); e('v_max_f32 v54, v53, v54')
    e('v_sub_f32 v58, v58, v54'); e('v_sub_f32 v52, v52, v54'); e('v_mul_f32 v58, v58, v63'); e('v_mul_f32 v52, v52, v63')
    e('v_exp_f32 v58, v58'); e('v_exp_f32 v52, v52')
    e('v_cvt_pk_bf16_f32 v57, v58, v58'); e('v_cvt_pk_bf16_f32 v56, v52, v52')
    e('v_add_f32 v55, v58, v52')
    def amask(t):
        s, b = (56, 4 * t) if t < 4 else (57, 4 * (t - 4))
        for d in range(4): e(f'v_and_b32_dpp v{KB+4*t+d}, v{s}, v{4+d} row_newbcast:{b} {D}')
    def pv(t): e(f'v_mfma_f32_16x16x32_bf16 v[44:47], v[{KB+4*t}:{KB+3+4*t}], v[{VB+4*t}:{VB+3+4*t}], ' + ('0' if t == 4 else 'v[44:47]'))
    amask(4)
    e(f'v_add_f32_dpp v55, v55, v55 row_ror:8 {D}')
    amask(5)
    e(f'v_add_f32_dpp v55, v55, v55 row_ror:4 {D}')
    e('v_mov_b32 v53, v55')
    amask(6)
    e('v_permlane32_swap_b32 v53, v55'); e('v_add_f32 v55, v53, v55'); e('v_mov_b32 v53, v55')
    e('v_permlane16_swap_b32 v53, v55'); e('v_add_f32 v55, v53, v55')
    e('s_mov_b64 exec, 1'); e('ds_write2_b32 v21, v54, v55 offset0:0 offset1:8'); e('s_mov_b64 exec, -1')
    stamp(5)
    if lt: TO = lt; TA = lt if wpf else 0
    com = com and TA == TO
    def otrail():
        e('s_lshl_b32 s62, s35, 13'); e(f's_add_u32 s62, s62, {WB}')
        for t in range(pre, lt): wdma(t, 23, 31)
    def atrail():
        nl = (64 // lt) * (2 if wpf == 2 else 1)
        e(f's_mov_b64 exec, {hex((1 << nl) - 1)}' if nl < 64 else 's_nop 0')
        for t in range(pre, lt): e(f'global_load_dword v124, v23, s[16:17] offset:{4096//lt*t}')
        e('s_mov_b64 exec, -1')
    def pvs(x, T):
        for k, t in enumerate((4, 5, 6, 0, 1, 2, 3)[:3+x]):
            if k < x: amask(k)
            e(f's_waitcnt vmcnt({T+2+x-k})'); pv(t)
        e('s_nop 5')
        e('s_branch PVD')
    e(f's_cmp_lt_u32 s37, {4 if com else 6}')
    if lt > pre: e('s_waitcnt lgkmcnt(0)')
    e('s_cbranch_scc1 NOTA')
    if lt == pre: pass
    elif lt and com:
        e('s_cmp_lt_u32 s37, 6')
        e('s_cbranch_scc0 LT_A')
        otrail()
        e('s_branch LT_C')
        e('LT_A:')
        atrail()
        e('LT_C:')
    elif lt and wpf: atrail()
    pvs(xa, TA)
    P(1)
    e('NOTA:')
    if not com:
        e('s_cmp_lt_u32 s37, 4')
        e('s_cbranch_scc1 LQ2')
        if lt > pre: otrail()
        pvs(xo, TO)
    e('LQ2:')
    if qa:
        e('s_bitcmp1_b32 s37, 0'); e('s_cbranch_scc1 LQ3')
        pvs(1, 0)
        e('LQ3:')
    for t in range(nqg):
        e(f's_waitcnt vmcnt({nqg-1-t})'); pv(4 + t)
    e('PVD:')
    e('s_mov_b64 exec, 0xffffffff')
    e(f'ds_write_b128 v14, v[44:47] offset:{QP}')
    e('s_mov_b64 exec, -1')
    e('s_cmp_lg_u32 s35, 7')
    e('s_waitcnt lgkmcnt(0)')
    stamp(7)
    e('s_barrier')
    e('s_cbranch_scc1 L_LSE')
    e(f'ds_read_b128 v[40:43], v19 offset:{MX}')
    e('v_mov_b32 v34, v63')
    reduce8(15)
    e('s_waitcnt lgkmcnt(4)')
    e('v_max3_f32 v32, v40, v41, v42'); e('v_max_f32 v32, v32, v43')
    e(f'v_max_f32_dpp v32, v32, v32 row_ror:8 {D}')
    for k in (40, 42): e(f'v_pk_add_f32 v[{k}:{k+1}], v[{k}:{k+1}], v[32:33] op_sel_hi:[1,0] neg_lo:[0,1] neg_hi:[0,1]')
    for k in (40, 42): e(f'v_pk_mul_f32 v[{k}:{k+1}], v[{k}:{k+1}], v[34:35] op_sel_hi:[1,0]')
    for k in range(40, 44): e(f'v_exp_f32 v{k}, v{k}')
    e('s_waitcnt lgkmcnt(0)')
    for h in (0, 2): e(f'v_pk_mul_f32 v[{48+h}:{49+h}], v[{48+h}:{49+h}], v[40:41] op_sel_hi:[1,0]')
    for h in (0, 2): e(f'v_pk_mul_f32 v[{56+h}:{57+h}], v[{56+h}:{57+h}], v[42:43] op_sel_hi:[1,0]')
    for h in (0, 2): e(f'v_pk_fma_f32 v[{48+h}:{49+h}], v[{52+h}:{53+h}], v[40:41], v[{48+h}:{49+h}] op_sel:[0,1,0]')
    for h in (0, 2): e(f'v_pk_fma_f32 v[{56+h}:{57+h}], v[{60+h}:{61+h}], v[42:43], v[{56+h}:{57+h}] op_sel:[0,1,0]')
    for h in (0, 2): e(f'v_pk_add_f32 v[{48+h}:{49+h}], v[{48+h}:{49+h}], v[{56+h}:{57+h}]')
    for k in range(4): e(f'v_add_f32_dpp v{48+k}, v{48+k}, v{48+k} row_ror:8 {D}')
    e('s_mov_b64 exec, s[40:41]')
    e('v_cvt_pk_bf16_f32 v38, v48, v49'); e('v_cvt_pk_bf16_f32 v39, v50, v51')
    e('s_not_b64 exec, exec')
    e('v_cvt_pk_bf16_f32 v36, v48, v49'); e('v_cvt_pk_bf16_f32 v37, v50, v51')
    e('s_mov_b64 exec, s[42:43]')
    e('global_store_dwordx4 v10, v[36:39], s[32:33]')
    e('global_store_dwordx4 v11, v[36:39], s[32:33] sc1')
    e('s_mov_b64 exec, -1')
    stamp(8)
    e('s_branch L_B5')
    P(1)
    e('L_LSE:')
    e('s_cmp_lg_u32 s35, 0')
    e('s_cbranch_scc1 L_B5')
    e(f'ds_read_b32 v48, v18 offset:{MX}'); e(f'ds_read_b32 v49, v18 offset:{MX+32}')
    e('s_waitcnt lgkmcnt(1)')
    e(f'v_max_f32_dpp v36, v48, v48 quad_perm:[1,0,3,2] {D}')
    e(f'v_max_f32_dpp v36, v36, v36 quad_perm:[2,3,0,1] {D}')
    e(f'v_max_f32_dpp v36, v36, v36 row_half_mirror {D}')
    e('v_sub_f32 v48, v48, v36'); e('v_mul_f32 v48, v48, v63'); e('v_exp_f32 v48, v48')
    e('s_waitcnt lgkmcnt(0)')
    e('v_mul_f32 v37, v48, v49')
    e(f'v_add_f32_dpp v37, v37, v37 quad_perm:[1,0,3,2] {D}')
    e(f'v_add_f32_dpp v37, v37, v37 quad_perm:[2,3,0,1] {D}')
    e(f'v_add_f32_dpp v37, v37, v37 row_half_mirror {D}')
    e('s_mov_b64 exec, 1')
    e('global_store_dwordx4 v16, v[36:39], s[32:33]')
    e('global_store_dwordx4 v17, v[36:39], s[32:33] sc1')
    e('s_mov_b64 exec, -1')
    stamp(6)
    e('L_B5:')
    e('s_lshr_b32 s40, s37, 1')
    e('s_cmp_eq_u32 s40, 2')
    e('s_barrier')
    e('s_cbranch_scc0 NOTOP')

    e('s_lshr_b32 s40, s35, 2'); e('s_and_b32 s41, s35, 3')
    e('s_lshl_b32 s62, s35, 13'); e(f's_add_u32 s62, s62, {WB}')
    if lt:
        for t in range(lt, 8): wdma(t, 23, 31)
    e('v_and_b32 v26, 1, v2'); e('v_lshlrev_b32 v24, 2, v26'); e('v_and_b32 v25, 7, v3'); e('v_xor_b32 v24, v24, v25')
    e('v_lshrrev_b32 v27, 1, v2'); e('v_lshl_add_u32 v24, v27, 3, v24'); e('v_lshlrev_b32 v24, 4, v24')
    e('s_lshl_b32 s42, s38, 1'); e('s_add_u32 s42, s42, s40')
    e('s_lshl_b32 s43, s42, 8'); e(f's_add_u32 s43, s43, 0x{H2LO:x}'); e('v_add_u32 v24, s43, v24')
    e('s_lshl_b32 s43, s42, 13'); e('s_lshl_b32 s42, s41, 7'); e('s_add_u32 s43, s43, s42'); e(f's_add_u32 s43, s43, 0x{H2O:x}')
    e('v_lshlrev_b32 v25, 9, v3'); e('v_lshl_add_u32 v25, v2, 4, v25'); e('v_add_u32 v25, s43, v25')
    e('v_lshl_add_u32 v27, v26, 1, v27'); e('v_lshl_add_u32 v27, v27, 4, v3'); e('v_lshlrev_b32 v27, 2, v27')
    e('s_lshl_b32 s42, s38, 11'); e('s_and_b32 s43, s39, 7'); e('s_lshl_b32 s43, s43, 8'); e('s_add_u32 s42, s42, s43'); e(f's_add_u32 s42, s42, 0x{H3O:x}')
    if h3c > 1: e('s_lshl_b32 s43, s35, 14'); e('s_add_u32 s42, s42, s43')
    e('v_add_u32 v27, s42, v27')
    e('v_and_b32 v16, 3, v3'); e('v_lshlrev_b32 v16, 3, v16'); e('v_lshrrev_b32 v28, v16, s34')
    e('v_lshrrev_b32 v17, 2, v3'); e('v_lshl_add_u32 v16, v17, 7, v16'); e('v_mul_u32_u24 v17, 1056, v2'); e('v_add3_u32 v16, v16, v17, s62')
    for cg in range(1, 4): e(f'v_xor_b32 v{16+cg}, {32*cg}, v16')
    e('v_lshlrev_b32 v29, 2, v1'); e('s_lshl_b32 s42, s35, 8'); e('v_add_u32 v26, s42, v29')
    for r in range(8): e(f'v_mov_b32 v{56+r}, 0')
    e(f's_mov_b32 s49, {dual}')
    W(2)
    def opoll():
        e('global_load_dwordx4 v[48:51], v24, s[32:33] sc1')
        e('global_load_dwordx4 v[64:67], v25, s[32:33] sc1')
        e('global_load_dwordx4 v[68:71], v25, s[32:33] offset:64 sc1')
    opoll()
    e('s_waitcnt vmcnt(3)')
    for hb in range(2):
        for cg in range(4):
            b = BB + (hb * 4 + cg) * 4
            for a in range(2):
                e(f'ds_read_b64_tr_b16 v[{b+2*a}:{b+2*a+1}], v{16+cg} offset:{hb*4096+a*512}')
    stamp(9)
    e('s_branch OCHK')
    e('OPOLL:')
    e('s_sub_u32 s49, s49, 1')
    e('s_cmp_lg_u32 s49, 0')
    e('s_cbranch_scc1 OP2')
    e(f'v_add_u32 v24, 0x{COPYB:x}, v24'); e(f'v_add_u32 v25, 0x{COPYB:x}, v25')
    e('OP2:')
    if osleep: e(f's_sleep {osleep}')
    if mrep & 1:
        e('s_mov_b64 exec, vcc'); e('global_load_dwordx4 v[48:51], v24, s[32:33] sc1')
        e('s_mov_b64 exec, s[40:41]'); e('global_load_dwordx4 v[64:67], v25, s[32:33] sc1')
        e('global_load_dwordx4 v[68:71], v25, s[32:33] offset:64 sc1')
        e('s_mov_b64 exec, -1')
    else: opoll()
    e('OCHK:')
    e('s_waitcnt vmcnt(0)')
    e('v_cmp_ne_u32 s[40:41], s34, v64'); e('v_cmp_ne_u32 s[42:43], s34, v71'); e('v_cmp_ne_u32 vcc, s34, v51')
    for k in range(4): e(f'v_mov_b32_dpp v{56+k}, v{66+k} quad_perm:[0,1,2,3] row_mask:0xf bank_mask:0x3')
    e('s_or_b64 s[40:41], s[40:41], s[42:43]'); e('s_or_b64 s[42:43], vcc, s[40:41]')
    e('s_cbranch_scc0 OOK')
    e('s_sub_u32 s50, s50, 1')
    e('s_cbranch_scc0 OPOLL')
    P(2)
    e('OOK:')
    stamp(10)
    def omf(hb, cg):
        b = BB + (hb * 4 + cg) * 4; d = 80 + cg * 4
        e(f'v_mfma_f32_16x16x32_bf16 v[{d}:{d+3}], v[{56+4*hb}:{59+4*hb}], v[{b}:{b+3}], ' + (f'v[{d}:{d+3}]' if hb else '0'))
    e('s_waitcnt lgkmcnt(0)')
    omf(0, 0)
    e(f'v_max_f32_dpp v52, v48, v48 quad_perm:[1,0,3,2] {D}')
    for k in range(2): e(f'v_mov_b32_dpp v{60+k}, v{66+k} quad_perm:[0,1,2,3] row_mask:0xf bank_mask:0xc')
    omf(0, 1)
    e(f'v_max_f32_dpp v52, v52, v52 quad_perm:[2,3,0,1] {D}')
    for k in range(2, 4): e(f'v_mov_b32_dpp v{60+k}, v{66+k} quad_perm:[0,1,2,3] row_mask:0xf bank_mask:0xc')
    omf(0, 2)
    e(f'v_max_f32_dpp v52, v52, v52 row_half_mirror {D}')
    e('v_sub_f32 v52, v48, v52')
    omf(0, 3)
    e(f'v_mul_f32 v52, 0x{LOG2E:x}, v52'); e('v_exp_f32 v52, v52')
    omf(1, 0)
    e('v_mul_f32 v53, v52, v49')
    omf(1, 1)
    e(f'v_mov_b32_dpp v72, v52 row_newbcast:0 {D}')
    e(f'v_add_f32_dpp v53, v53, v53 quad_perm:[1,0,3,2] {D}')
    omf(1, 2)
    e(f'v_mov_b32_dpp v73, v52 row_newbcast:1 {D}')
    e(f'v_add_f32_dpp v53, v53, v53 quad_perm:[2,3,0,1] {D}')
    omf(1, 3)
    e(f'v_mov_b32_dpp v74, v52 row_newbcast:2 {D}')
    e(f'v_add_f32_dpp v53, v53, v53 row_half_mirror {D}')
    e(f'v_mov_b32_dpp v75, v52 row_newbcast:3 {D}')
    e('v_rcp_f32 v53, v53')
    for cg in range(4):
        e(f'v_pk_mul_f32 v[{32+2*cg}:{33+2*cg}], v[{80+4*cg}:{81+4*cg}], v[72:73]')
        e(f'v_pk_fma_f32 v[{32+2*cg}:{33+2*cg}], v[{82+4*cg}:{83+4*cg}], v[74:75], v[{32+2*cg}:{33+2*cg}]')
        e(f'v_add_f32 v{40+cg}, v{32+2*cg}, v{33+2*cg}')
        if cg & 1: e(f'v_pk_mul_f32 v[{39+cg}:{40+cg}], v[{39+cg}:{40+cg}], v[52:53] op_sel:[0,1]')
        if cg == 2: e('v_permlane32_swap_b32 v40, v41'); e('v_add_f32 v40, v40, v41')
    e(f's_cmp_ge_u32 s35, {h3c}')
    e('v_permlane32_swap_b32 v42, v43')
    e('v_add_f32 v42, v42, v43')
    e('v_permlane16_swap_b32 v40, v42')
    e('v_add_f32 v40, v40, v42')
    e(f'ds_write_b32 v26, v40 offset:{RED}')
    e('s_waitcnt lgkmcnt(0)')
    stamp(11)
    e('s_barrier')
    e('s_cbranch_scc1 FIN')
    for k in range(4): e(f'ds_read2st64_b32 v[{48+2*k}:{49+2*k}], v29 offset0:{RED//256+2*k} offset1:{RED//256+2*k+1}')
    e('s_waitcnt lgkmcnt(2)')
    e('v_pk_add_f32 v[48:49], v[48:49], v[50:51]')
    e('s_waitcnt lgkmcnt(0)')
    e('v_pk_add_f32 v[52:53], v[52:53], v[54:55]')
    e('v_pk_add_f32 v[48:49], v[48:49], v[52:53]'); e('v_add_f32 v48, v48, v49')
    e('v_bfi_b32 v48, v8, v28, v48')
    e('global_store_dword v27, v48, s[32:33] sc1')
    stamp(12)
    e('FIN:')
    if stamps:
        e('s_cmp_eq_u32 s35, 0'); e('s_cselect_b32 s41, 0, 128'); e('s_cbranch_scc1 FL'); e('s_cmp_eq_u32 s35, 7'); e('s_cbranch_scc0 END')
        e('FL:'); e('s_mov_b64 exec, 0xffff')
        e('s_lshl_b32 s40, s2, 8'); e('s_add_u32 s40, s40, s41'); e('s_add_u32 s40, s40, 0x8000000'); e('v_lshlrev_b32 v24, 3, v1'); e('v_add_u32 v24, s40, v24')
        e(f'v_mov_b32 v{SV+1}, 0'); e(f'global_store_dwordx2 v24, v[{SV}:{SV+1}], s[32:33]')
    e('END:')
    e('s_endpgm')
    P(2)

    e('QFB:')
    e('s_lshl_b32 s40, s36, 10'); e('s_lshl_b32 s41, s35, 7'); e('s_add_u32 s40, s40, s41'); e(f's_add_u32 s40, s40, 0x{H1C:x}')
    e('v_and_b32 v51, 31, v1'); e('v_lshl_add_u32 v10, v51, 2, s40')
    e('v_and_b32 v50, 3, v3'); e('v_lshlrev_b32 v50, 3, v50'); e('v_lshrrev_b32 v50, v50, s34'); e('v_and_b32 v50, 0xff, v50')
    e('v_lshl_add_u32 v11, v51, 1, v11')
    e('QFB1:')
    e('global_load_dword v48, v10, s[32:33] sc1')
    e('global_load_dword v49, v10, s[32:33] offset:512 sc1')
    e('s_waitcnt vmcnt(0)')
    e('v_xor_b32 v48, v48, v50'); e('v_xor_b32 v49, v49, v50'); e('v_or_b32 v51, v48, v49'); e('v_and_b32 v51, 0xff, v51')
    e('v_cmp_ne_u32 vcc, 0, v51')
    e('s_nop 4')
    e('s_cbranch_vccz QFB2')
    e('s_sub_u32 s50, s50, 1')
    e('s_cbranch_scc0 QFB1')
    e('QFB2:')
    e('v_add_f32 v48, v48, v49'); e('v_cvt_pk_bf16_f32 v48, v48, v48')
    e(f'ds_write_b16 v11, v48 offset:{QF}')
    e('s_branch QDONE')

    P(1)
    e('NOTOP:')
    e('s_min_u32 s40, s38, 3'); e('s_mul_i32 s41, s38, 5'); e('s_add_u32 s40, s40, s41')
    e('s_cmp_lt_u32 s37, 4')
    e('s_cbranch_scc0 NOTQ')
    if w2pf:
        e('s_cmp_lt_u32 s35, 4'); e('s_cbranch_scc1 PFW1')
        e('s_cmp_eq_u32 s35, 7'); e('s_cbranch_scc1 FIN')
        e('s_lshl_b32 s40, s40, 15'); e('s_mul_i32 s41, s39, 3'); e('s_add_u32 s41, s41, s35'); e('s_sub_u32 s41, s41, 4'); e('s_lshl_b32 s41, s41, 12'); e('s_add_u32 s40, s40, s41')
        e(f's_min_u32 s40, s40, {1376*1024-4096}')
        e('v_lshl_add_u32 v16, v1, 6, s40')
        e('global_load_dword v48, v16, s[24:25]')
        e('s_waitcnt vmcnt(0)')
        e('s_branch FIN')
        e('PFW1:')
        e('s_lshl_b32 s41, s39, 2'); e('s_add_u32 s41, s41, s35'); e('s_mul_i32 s41, s41, 8*2752'); e('s_lshl_b32 s40, s40, 6'); e('s_add_u32 s40, s40, s41')
        e('v_lshrrev_b32 v16, 3, v1'); e('v_mul_u32_u24 v16, 2752, v16'); e('v_and_b32 v17, 7, v1'); e('v_min_u32 v17, 5, v17'); e('v_lshl_add_u32 v16, v17, 6, v16')
        e('v_add_u32 v16, s40, v16'); e(f'v_min_u32 v16, {512*2752-4}, v16')
        e('global_load_dword v48, v16, s[20:21]')
        e('s_waitcnt vmcnt(0)')
    e('s_branch FIN')
    e('NOTQ:')
    e('s_cmp_lt_u32 s2, 235')
    e('s_cbranch_scc0 FIN')
    e('s_sub_u32 s41, s39, 24'); e('s_add_u32 s53, s40, s41')
    e('s_lshl_b32 s62, s35, 12'); e(f's_add_u32 s62, s62, {WB}')
    e('v_and_b32 v24, 3, v3'); e('v_lshrrev_b32 v16, 2, v1'); e('v_lshlrev_b32 v17, 4, v24')
    e('v_lshrrev_b32 v23, 2, v3'); e('v_lshlrev_b32 v23, 6, v23'); e('v_lshl_add_u32 v23, v2, 9, v23')
    e('v_lshl_add_u32 v23, v24, 3, v23'); e('v_add_u32 v23, s62, v23')
    e('s_and_b32 s54, s53, 1')
    e('s_mul_i32 s40, s35, 64*2752'); e('s_lshl_b32 s41, s53, 6'); e('s_add_u32 s40, s40, s41')
    e('s_movk_i32 s42, 2752')
    e('v_mad_u32_u24 v16, v16, s42, v17')
    e('s_mul_i32 s41, s54, 32*2752'); e('s_add_u32 s42, s40, s41'); e('s_sub_u32 s40, s40, s41'); e(f's_add_u32 s40, s40, {32*2752}')
    e('v_add_u32 v18, s40, v16'); e('v_add_u32 v16, s42, v16')
    e(f'v_add_u32 v17, {16*2752}, v16'); e(f'v_add_u32 v19, {16*2752}, v18')
    e('s_lshl_b32 s43, s54, 11'); e('s_add_u32 s62, s62, s43')
    for q in range(4): dma(q)
    e('v_lshrrev_b32 v24, 3, v1')
    e('v_and_b32 v25, 7, v1')
    e('v_lshlrev_b32 v26, 12, v24'); e('v_lshl_add_u32 v26, v25, 4, v26')
    e('s_lshl_b32 s40, s53, 15'); e('s_lshl_b32 s41, s35, 7'); e('s_add_u32 s40, s40, s41'); e('v_add_u32 v26, s40, v26')
    if now2: e('s_mov_b64 exec, 1')
    for t in range(4): e(f'global_load_dwordx4 v[{112+4*t}:{115+4*t}], v26, s[24:25] offset:{1024*t} nt')
    if now2: e('s_mov_b64 exec, -1')
    e('v_sub_u32 v27, 7, v25'); e('v_min_u32 v27, v27, v25'); e('v_lshl_add_u32 v27, v24, 2, v27')
    e('s_lshl_b32 s41, s53, 6'); e('v_lshl_add_u32 v28, v27, 1, s41')
    e('v_lshrrev_b32 v29, 2, v25'); e('v_lshlrev_b32 v29, 4, v29'); e('v_lshl_add_u32 v27, v27, 5, v29')
    e('v_lshrrev_b32 v29, 3, v3'); e('v_lshlrev_b32 v29, 6, v29'); e('v_lshl_add_u32 v29, v2, 4, v29')
    e('v_and_b32 v30, 1, v3'); e('v_lshl_add_u32 v29, v30, 3, v29'); e('v_and_b32 v31, 4, v3'); e('v_add_u32 v29, v29, v31')
    e('s_lshl_b32 s41, s35, 7'); e('v_add_u32 v29, s41, v29')
    e('v_lshrrev_b32 v31, 1, v3'); e('v_lshlrev_b32 v31, 11, v31'); e('v_lshl_add_u32 v31, v2, 5, v31'); e('v_lshl_add_u32 v31, v30, 4, v31')
    e('s_lshl_b32 s41, s35, 8'); e(f's_add_u32 s41, s41, 0x{H3O:x}')
    if h3c > 1: e(f's_and_b32 s42, s38, {h3c-1}'); e('s_lshl_b32 s42, s42, 14'); e('s_add_u32 s41, s41, s42')
    e('v_add_u32 v31, s41, v31')
    e('global_load_ushort v32, v28, s[22:23]')
    e('global_load_dword v33, v29, s[8:9]')
    e('v_and_b32 v34, 3, v1'); e('v_lshl_add_u32 v34, v34, 2, v2'); e('s_and_b32 s41, s53, 31'); e('s_lshl_b32 s41, s41, 5'); e('v_lshl_add_u32 v34, v34, 1, s41')
    e('global_load_ushort v35, v34, s[26:27]')
    e('s_lshl_b32 s41, s35, 2'); e('v_lshl_add_u32 v36, v3, 5, s41')
    e(f'v_mov_b32 v37, {DUM-RED}'); e('v_cmp_gt_u32 vcc, 16, v1'); e('v_cndmask_b32 v36, v37, v36, vcc')
    e('v_lshrrev_b32 v37, 3, v3'); e('v_lshl_add_u32 v37, v37, 5, s41')
    e('v_and_b32 v38, 3, v1'); e('v_lshlrev_b32 v38, 4, v38')
    e('v_and_b32 v39, 1, v2'); e('v_lshlrev_b32 v39, 4, v39'); e('v_lshl_add_u32 v39, v25, 5, v39')
    e('v_lshrrev_b32 v40, 1, v2'); e('v_lshl_add_u32 v39, v40, 3, v39')
    e('s_lshl_b32 s40, s53, 11'); e('s_lshl_b32 s41, s35, 8'); e('s_add_u32 s40, s40, s41'); e(f's_add_u32 s40, s40, 0x{H4O:x}'); e('v_add_u32 v39, s40, v39')
    e('v_lshlrev_b32 v40, 4, v40'); e('v_lshrrev_b32 v40, v40, s34'); e('v_lshrrev_b32 v41, 8, v40')
    e('v_lshrrev_b32 v42, 2, v1'); e('v_lshlrev_b32 v42, 11, v42'); e('v_add_u32 v42, v42, v38')
    e('s_lshl_b32 s40, s53, 6'); e(f's_add_u32 s40, s40, 0x{H4O:x}'); e('v_add_u32 v42, s40, v42')
    e('v_add_u32 v43, 0x8000, v42'); e('v_add_u32 v44, 0x10000, v42')
    for d in range(4): e(f'v_mov_b32 v{48+d}, 0x3f803f80')
    W(4)
    e('s_waitcnt vmcnt(7)')
    for u in range(2):
        for cg in range(2):
            b = BB + (u * 2 + cg) * 4
            for a in range(2):
                e(f'ds_read_b64_tr_b16 v[{b+2*a}:{b+2*a+1}], v23 offset:{a*2048+u*256+cg*32}')
    e('s_waitcnt lgkmcnt(0)')
    e(f'v_mfma_f32_16x16x32_bf16 v[80:83], v[48:51], v[{BB}:{BB+3}], 0')
    e(f'v_mfma_f32_16x16x32_bf16 v[84:87], v[48:51], v[{BB+4}:{BB+7}], 0')
    e(f'v_mfma_f32_16x16x32_bf16 v[80:83], v[48:51], v[{BB+8}:{BB+11}], v[80:83]')
    e(f'v_mfma_f32_16x16x32_bf16 v[84:87], v[48:51], v[{BB+12}:{BB+15}], v[84:87]')
    e(f'ds_write_b32 v36, v80 offset:{QP}'); e(f'ds_write_b32 v36, v84 offset:{QP+512}')
    e('s_waitcnt lgkmcnt(0)')
    e('s_barrier')
    e(f'ds_read_b128 v[52:55], v27 offset:{QP}')
    e('s_waitcnt lgkmcnt(0)')
    e('v_add_f32 v52, v52, v53'); e('v_add_f32 v54, v54, v55'); e('v_add_f32 v45, v52, v54')
    e(f'v_add_f32_dpp v45, v45, v45 row_half_mirror {D}')
    e('v_mov_b32 v60, 0x3b000000')
    stamp(9)
    if h4pre or outpre:
        e('s_cmp_lg_u32 s35, 0'); e('s_cbranch_scc1 NOH4')
        if h4pre:
            e('global_load_dword v88, v42, s[32:33] sc1'); e('global_load_dword v89, v43, s[32:33] sc1'); e('global_load_dword v90, v44, s[32:33] sc1')
        if outpre: e('global_load_ushort v91, v34, s[28:29]')
        e('NOH4:')
    e('s_mov_b64 vcc, -1')
    for k in range(hpipe):
        e('global_load_dwordx4 v[12:15], v31, s[32:33] sc1')
        e('global_load_dwordx4 v[16:19], v31, s[32:33] offset:128 sc1')
        e(f's_sleep {hdel}')
    e('HPOLL:')
    if hsl: e(f's_sleep {hsl}')
    if mrep & 2: e('s_mov_b64 exec, vcc')
    e('global_load_dwordx4 v[12:15], v31, s[32:33] sc1')
    e('global_load_dwordx4 v[16:19], v31, s[32:33] offset:128 sc1')
    if mrep & 2: e('s_mov_b64 exec, -1')
    e(f's_waitcnt vmcnt({2*hpipe})')
    for k in range(8): e(f'v_xor_b32 v{64+k}, s{44+(k&3)}, v{12+k}')
    e('v_or3_b32 v72, v64, v65, v66'); e('v_or3_b32 v73, v67, v68, v69'); e('v_or3_b32 v72, v72, v70, v71')
    e('v_or_b32 v72, v72, v73'); e('v_and_b32 v72, 0xff, v72')
    e('v_cmp_ne_u32 vcc, 0, v72')
    for k in range(4): e(f'v_add_f32_dpp v{64+k}, v{64+k}, v{64+k} row_ror:8 row_mask:0xf bank_mask:0x3')
    e('s_cbranch_vccz HOK')
    e('s_sub_u32 s50, s50, 1')
    e('s_cbranch_scc0 HPOLL')
    P(4)
    e('HOK:')
    stamp(10)
    for k in range(4): e(f'v_add_f32_dpp v{64+k}, v{68+k}, v{68+k} row_ror:8 row_mask:0xf bank_mask:0xc')
    for k in range(2): e(f'v_add_f32_dpp v{64+k}, v{64+k}, v{64+k} row_shl:4 row_mask:0xf bank_mask:0x5')
    for k in range(2): e(f'v_add_f32_dpp v{64+k}, v{66+k}, v{66+k} row_shr:4 row_mask:0xf bank_mask:0xa')
    e('v_lshlrev_b32 v46, 16, v33')
    for k in range(2): e(f'v_add_f32_dpp v{64+k}, v{64+k}, v{64+k} quad_perm:[2,3,0,1] {D}')
    e('v_and_b32 v47, s48, v33')
    rbf(64, 64); rbf(65, 65)
    e('v_pk_add_f32 v[64:65], v[64:65], v[46:47]')
    e('v_cvt_pk_bf16_f32 v72, v64, v65')
    e(f'ds_write_b32 v29, v72 offset:{HB}')
    e('v_dot2_f32_bf16 v64, v72, v48, 0')
    for d in range(1, 4): e(f'v_mov_b32_dpp v{72+d}, v72 row_ror:{16-4*d} {D}')
    e('v_dot2_f32_bf16 v65, v72, v72, 0')
    def fmf(u, cg):
        b = BB + (u * 2 + cg) * 4; d = 80 + (u * 2 + cg) * 4
        e(f'v_mfma_f32_16x16x32_bf16 v[{d}:{d+3}], v[72:75], v[{b}:{b+3}], 0')
    fmf(0, 0)
    e('v_add_f32_dpp v64, v64, v64 row_ror:8 row_mask:0xf bank_mask:0x3')
    e('v_lshlrev_b32 v32, 16, v32')
    e('v_add_f32_dpp v64, v65, v65 row_ror:8 row_mask:0xf bank_mask:0xc')
    fmf(1, 0)
    e(f'v_add_f32_dpp v64, v64, v64 row_half_mirror {D}')
    fmf(0, 1)
    e(f'v_add_f32_dpp v64, v64, v64 quad_perm:[1,0,3,2] {D}')
    e('v_mov_b32 v65, v64')
    fmf(1, 1)
    e('v_permlane32_swap_b32 v64, v65'); e('v_add_f32 v64, v64, v65')
    e('v_mov_b32 v65, v64'); e('v_add_f32 v80, v80, v89'); e('v_permlane16_swap_b32 v64, v65'); e('v_add_f32 v64, v64, v65')
    e(f'ds_write_b32 v36, v80 offset:{RED}')
    e(f'ds_write_b32 v37, v64 offset:{ST}')
    e('v_add_f32 v84, v84, v93')
    e(f'ds_write_b32 v36, v84 offset:{RED+512}')
    e('s_waitcnt lgkmcnt(0)')
    P(4)
    e('s_barrier')
    e(f'ds_read_b128 v[56:59], v38 offset:{ST}')
    e(f'ds_read_b128 v[52:55], v27 offset:{RED}')
    e(f'ds_read_u16 v61, v34 offset:{HB}')
    e('s_waitcnt lgkmcnt(2)')
    e('v_pk_add_f32 v[56:57], v[56:57], v[58:59]'); e('v_add_f32 v56, v56, v57')
    e('s_waitcnt lgkmcnt(1)')
    e('v_pk_add_f32 v[52:53], v[52:53], v[54:55]')
    e(f'v_add_f32_dpp v56, v56, v56 quad_perm:[1,0,3,2] {D}')
    e('v_add_f32 v52, v52, v53')
    e(f'v_mul_f32_dpp v57, v56, v60 quad_perm:[0,0,0,0] {D}')
    e(f'v_mul_f32_dpp v58, v56, v60 quad_perm:[2,2,2,2] {D}')
    e('v_fma_f32 v58, -v57, v57, v58')
    e('v_max_f32 v58, 0, v58')
    rbf(58, 58)
    e(f'v_add_f32_dpp v52, v52, v52 row_half_mirror {D}')
    e(f'v_add_f32 v58, 0x{EPS:x}, v58'); rbf(58, 58)
    e('v_sqrt_f32 v58, v58')
    rbf(57, 57)
    rbf(58, 58)
    e('v_rcp_f32 v58, v58')
    e('v_fma_f32 v52, -v57, v45, v52')
    e('v_mul_f32 v52, v52, v58'); rbf(52, 52)
    e('v_add_f32 v52, v52, v32'); rbf(52, 52)
    e('v_max_f32 v52, 0, v52'); e('v_mul_f32 v52, v52, v52')
    e('v_cvt_pk_bf16_f32 v52, v52, v52')
    P(4)
    e('s_mov_b32 s40, 0x00ff00ff'); e('s_mov_b32 s41, s40')
    for t in range(4):
        a = 64 + 4 * t
        for d in range(4):
            s = t if d < 2 else 3 - t
            e(f'v_and_b32_dpp v{a+d}, v52, v{4+d} quad_perm:[{s},{s},{s},{s}] {D}')
        if t >= 1:
            c = '0' if t == 1 else 'v[80:83]'
            e(f'v_mfma_f32_16x16x32_bf16 v[80:83], v[{a-4}:{a-1}], v[{108+4*t}:{111+4*t}], {c}')
    e(f'v_mfma_f32_16x16x32_bf16 v[80:83], v[76:79], v[124:127], v[80:83]')
    e('v_permlane32_swap_b32 v80, v82'); e('v_permlane32_swap_b32 v81, v83')
    e(f'v_add_f32_dpp v80, v82, v80 row_ror:8 {D}'); e(f'v_add_f32_dpp v81, v83, v81 row_ror:8 {D}')
    e('v_bfi_b32 v80, v8, v40, v80'); e('v_bfi_b32 v81, v8, v41, v81')
    e('s_mov_b64 exec, s[40:41]')
    e('global_store_dwordx2 v39, v[80:81], s[32:33] sc1')
    e('s_mov_b64 exec, -1')
    stamp(11)
    e('s_cmp_lg_u32 s35, 0')
    e('s_cbranch_scc1 FIN')
    e('s_cmp_ge_u32 s53, 32')
    e('s_cbranch_scc1 FFIN')
    e('s_waitcnt lgkmcnt(0)')
    e('v_lshlrev_b32 v61, 16, v61'); e('v_lshlrev_b32 v35, 16, v35')
    e('s_mov_b32 s42, -1'); e('s_mov_b32 s43, 0xfff'); e('s_mov_b64 vcc, -1')
    for k in range(4): e(f'v_mov_b32 v{104+k}, s{44+k}')
    P(4)
    if fpre: e(f's_sleep {fpre}')
    if fwait: e('s_waitcnt vmcnt(0)')
    e('FPOLL:')
    if fdel: e(f's_sleep {fdel}')
    if mrep & 4: e('s_mov_b64 exec, vcc')
    e('global_load_dwordx4 v[96:99], v42, s[32:33] sc1')
    e('global_load_dwordx4 v[100:103], v43, s[32:33] sc1')
    e('s_and_b64 exec, exec, s[42:43]')
    e('global_load_dwordx4 v[104:107], v44, s[32:33] sc1')
    e('s_mov_b64 exec, -1')
    e('s_waitcnt vmcnt(0)')
    for k in range(12): e(f'v_xor_b32 v{64+k}, s{44+(k&3)}, v{96+k}')
    e('v_or3_b32 v76, v64, v65, v66'); e('v_or3_b32 v77, v67, v68, v69'); e('v_or3_b32 v76, v76, v70, v71'); e('v_or3_b32 v77, v77, v72, v73')
    e('v_or3_b32 v76, v76, v74, v75'); e('v_or_b32 v76, v76, v77'); e('v_and_b32 v76, 0xff, v76')
    e('v_cmp_ne_u32 vcc, 0, v76')
    for k in (0, 2): e(f'v_pk_add_f32 v[{64+k}:{65+k}], v[{64+k}:{65+k}], v[{68+k}:{69+k}]')
    for k in (0, 2): e(f'v_pk_add_f32 v[{64+k}:{65+k}], v[{64+k}:{65+k}], v[{72+k}:{73+k}]')
    e('s_cbranch_vccz FOK')
    e('s_sub_u32 s50, s50, 1')
    e('s_cbranch_scc0 FPOLL')
    P(4)
    e('FOK:')
    stamp(12)
    e('v_permlane32_swap_b32 v64, v66'); e('v_permlane32_swap_b32 v65, v67')
    e('v_pk_add_f32 v[64:65], v[64:65], v[66:67]')
    e('s_mov_b32 s40, 0x000f000f'); e('s_mov_b32 s41, s40')
    e('v_permlane16_swap_b32 v64, v65')
    e('v_add_f32 v64, v64, v65')
    e(f'v_add_f32_dpp v64, v64, v64 row_ror:8 {D}'); e(f'v_add_f32_dpp v64, v64, v64 row_ror:4 {D}')
    rbf(64, 64); e('v_add_f32 v64, v64, v35'); rbf(64, 64); e('v_add_f32 v64, v64, v61')
    e('v_cvt_pk_bf16_f32 v64, v64, v64')
    e('s_mov_b64 exec, s[40:41]')
    e('global_store_short v34, v64, s[28:29]')
    e('s_cmp_lg_u32 s53, 0')
    e('s_cbranch_scc1 FFIN')
    e('s_mov_b64 exec, 1')
    e('v_mov_b32 v65, 0'); e('v_mov_b32 v66, s34')
    e('global_store_dword v65, v66, s[32:33]')
    e('FFIN:')
    stamp(13)
    e('s_branch FIN')
    L2 = []
    for l in L:
        if l.startswith(';@W'):
            site = int(l[3:])
            L2.append('s_mov_b64 exec, 0')
            for k, nm in enumerate(pads[site]):
                L2.append(f's_cmp_eq_u32 s35, {k}'); L2.append(f's_cbranch_scc1 {nm}')
            L2.append(f'WB{site}:'); L2.append('s_mov_b64 exec, -1')
        else: L2.append(l)
    out, npad = pad(L2)
    ad = sizes(out)
    print('size', ad[-1], 'nops', npad, {l.strip()[:-1]: ad[i] for i, l in enumerate(out) if l.strip().endswith(':')})
    out.append('.fill 700, 4, 0xbf810000')
    return wrap('\n'.join(out), 256, 512, LDS, 128), npad

if __name__ == '__main__':
    for spec in sys.argv[1:]:
        name, _, kw = spec.partition(':')
        kw = dict((k, int(v)) for k, v in (p.split('=') for p in kw.split(',') if p))
        s, n = gen(**kw); open(name + '.s', 'w').write(s)
```

```python
import sys
from asmlib import *

H1C, H2LO, H2O, H3O, H4O, H1O = 0x1000, 0x30000, 0x40000, 0x60000, 0x70000, 0x200000
COPYB = 0x100000
QP, QF, MX, RED, ST, HB, DUM, WB = 0, 4352, 4608, 5120, 7168, 7424, 8448, 16384
LDS = WB + 65536
TAGC = 0x9E3779B1
LOG2E = 0x3FB8AA3B
SCALE = 0x3DB504F3
EPS = 0x3727C5AC

def gen(fwait=1, stamps=0, maxtry=1 << 16, dual=24, cpf=1, warm=7, kpre=0, qpos=2, qsleep=4, ptouch=1, pdirty=1, w2pf=1, kbar=1, forcefb=0, osleep=0, hdel=0, fdel=0, nq=0, vpre=0, late=1, mrep=7, spf=3, h4pre=0, outpre=0, ncopy=8, fpre=0, hpipe=0):
    L = []
    e = L.append
    D = 'row_mask:0xf bank_mask:0xf'
    SV = 22
    def stamp(k):
        if stamps:
            e('s_memrealtime s[96:97]'); e('s_waitcnt lgkmcnt(0)'); e(f'v_writelane_b32 v{SV}, s96, {k}')
    def wave_sum(v, sdst, op='add'):
        for r in (8, 4, 2, 1): e(f'v_{op}_f32_dpp v{v}, v{v}, v{v} row_ror:{r} {D}')
        e(f'v_{op}_f32_dpp v{v}, v{v}, v{v} row_bcast:15 row_mask:0xa bank_mask:0xf')
        e(f'v_{op}_f32_dpp v{v}, v{v}, v{v} row_bcast:31 row_mask:0xc bank_mask:0xf')
        e(f'v_readlane_b32 s{sdst}, v{v}, 63')
    def rbf(d, s): e(f'v_cvt_pk_bf16_f32 v{d}, 0, v{s}')
    def reduce8(rd, st=512):
        for k in range(4): e(f'ds_read_b128 v[{48+4*k}:{51+4*k}], v{rd} offset:{QP+st*k}')
    def reduce8b(dp='row_ror:8'):
        e('s_waitcnt lgkmcnt(2)')
        e('v_pk_add_f32 v[48:49], v[48:49], v[52:53]'); e('v_pk_add_f32 v[50:51], v[50:51], v[54:55]')
        e('s_waitcnt lgkmcnt(0)')
        e('v_pk_add_f32 v[56:57], v[56:57], v[60:61]'); e('v_pk_add_f32 v[58:59], v[58:59], v[62:63]')
        e('v_pk_add_f32 v[48:49], v[48:49], v[56:57]'); e('v_pk_add_f32 v[50:51], v[50:51], v[58:59]')
        for k in range(4): e(f'v_add_f32_dpp v{48+k}, v{48+k}, v{48+k} {dp} {D}')
    KB, VB, BB = 96, 64, 96
    def ld(reg, base, first):
        if not first: e('v_add_u32 v12, 0x2000, v12')
        e(f'global_load_dwordx4 v[{reg}:{reg+3}], v12, {base} nt')
    def dma(q):
        e(f's_xor_b32 m0, s62, {q << 10}' if q else 's_mov_b32 m0, s62')
        e(f'global_load_lds_dwordx4 v{16+q}, s[20:21] nt')
    pads = {1: [], 2: [], 4: []}
    def P(site):
        if warm & site:
            nm = f'PAD{site}_{len(pads[site])}'; pads[site].append(nm)
            e(nm + ':'); e(f's_cbranch_execz WB{site}')
    def W(site):
        if warm & site: e(f';@W{site}')
    def qtry():
        e('s_load_dwordx16 s[64:79], s[98:99], 0')
        e('s_load_dwordx16 s[80:95], s[98:99], 64')
        e('s_load_dwordx16 s[8:23], s[98:99], 4096')
        e('s_load_dwordx8 s[24:31], s[98:99], 4160')
        e('s_load_dwordx8 s[56:63], s[98:99], 4192')
        e('s_add_u32 s98, s98, 256'); e('s_addc_u32 s99, s99, 0')

    e('s_cmp_ge_u32 s2, 256')
    e('s_cbranch_scc1 END')
    e('s_load_dwordx16 s[8:23], s[0:1], 0')
    e('s_load_dwordx2 s[32:33], s[0:1], 96')
    e('s_load_dwordx8 s[24:31], s[0:1], 64')
    if stamps: e('s_memrealtime s[96:97]'); e(f'v_mov_b32 v{SV}, 0')
    e('s_lshr_b32 s39, s2, 3')
    e('s_and_b32 s40, s39, 3')
    if cpf:
        e('s_getpc_b64 s[54:55]')
        e('s_lshl_b32 s41, s40, 7')
        e('s_add_u32 s54, s54, s41'); e('s_addc_u32 s55, s55, 0')
        e('v_lshlrev_b32 v10, 9, v0')
        e('v_mov_b32 v11, s55')
        e('v_add_co_u32 v10, vcc, s54, v10'); e('v_addc_co_u32 v11, vcc, 0, v11, vcc')
        e('v_cmp_gt_u32 vcc, 18, v0')
        e('s_and_saveexec_b64 s[56:57], vcc')
        e('s_cbranch_execz NOPF')
        e('global_load_dword v30, v[10:11], off')
        e('NOPF:')
        e('s_mov_b64 exec, -1')
    e('v_lshrrev_b32 v8, 6, v0')
    e('v_and_b32 v1, 63, v0')
    e('v_readfirstlane_b32 s35, v8')
    e('s_and_b32 s38, s2, 7')
    e('s_lshl_b32 s36, s38, 2')
    e('s_add_u32 s36, s36, s40')
    e('s_lshr_b32 s37, s39, 2')
    e('v_lshlrev_b32 v9, 4, v1')
    e('s_mul_i32 s41, s37, 3'); e('s_cmp_eq_u32 s37, 7'); e('s_cselect_b32 s41, 25, s41')
    e('s_lshl_b32 s41, s41, 3'); e('s_add_u32 s41, s41, s35'); e('s_lshl_b32 s41, s41, 10')
    e('s_lshl_b32 s42, s36, 20'); e('s_add_u32 s41, s41, s42'); e('s_add_u32 s41, s41, 0xC0000')
    e('v_add_u32 v13, s41, v9')
    e('v_mov_b32 v12, v13')
    e('v_lshrrev_b32 v2, 4, v1')
    e('v_and_b32 v3, 15, v1')
    e('s_cmp_lt_u32 s37, 4')
    e('s_cbranch_scc0 F_NQ')
    e('s_lshr_b32 s40, s37, 1'); e('s_lshl_b32 s40, s40, 3'); e('s_add_u32 s40, s40, s35'); e('s_lshl_b32 s40, s40, 5')
    e('v_lshrrev_b32 v10, 3, v1'); e('v_lshl_add_u32 v10, v10, 2, s40')
    e('s_lshl_b32 s41, s36, 1'); e('s_and_b32 s42, s37, 1'); e('s_add_u32 s41, s41, s42'); e('s_lshl_b32 s41, s41, 7')
    e('v_and_b32 v11, 0x70, v9'); e('v_lshl_add_u32 v11, v10, 13, v11'); e('v_add_u32 v11, s41, v11')
    e('v_lshlrev_b32 v10, 1, v10')
    e('s_waitcnt lgkmcnt(0)')
    e('global_load_dwordx4 v[16:19], v9, s[8:9]')
    e('global_load_dwordx2 v[20:21], v10, s[8:9]')
    for t in range(4):
        if t: e('v_add_u32 v11, 0x2000, v11')
        e(f'global_load_dwordx4 v[{64+4*t}:{67+4*t}], v11, s[14:15] nt')
    e('s_load_dword s34, s[32:33], 0')
    e('s_lshl_b32 s40, s36, 2'); e('s_add_u32 s40, s40, s37'); e('s_lshl_b32 s54, s40, 11'); e(f's_add_u32 s54, s54, 0x{H1O:x}')
    e('s_lshl_b32 s55, s40, 8'); e(f's_add_u32 s55, s55, 0x{H1C:x}')
    if ptouch:
        e('v_lshlrev_b32 v10, 7, v3'); e('v_add_u32 v10, s54, v10')
        e('s_cmp_lg_u32 s35, 0'); e('s_cbranch_scc1 NOTOUCH')
        e('global_load_dword v29, v10, s[32:33]')
        e('NOTOUCH:')
    if kpre:
        e('s_barrier')
        for t in range(kpre): ld(KB + 16 + 4 * t, 's[10:11]', t == 0)
    e('s_branch F_C')
    e('F_NQ:')
    e('s_waitcnt lgkmcnt(0)')
    if late: e('s_load_dword s34, s[32:33], 0')
    if spf:
        e('s_and_b32 s40, s39, 15')
        e('s_cmp_eq_u32 s35, 0'); e('s_cbranch_scc0 SPF1')
        if spf & 8: e('s_waitcnt lgkmcnt(0)')
        if spf & 1:
            e('s_lshl_b32 s41, s38, 4'); e('s_add_u32 s41, s41, s40'); e('s_lshl_b32 s41, s41, 15'); e('s_add_u32 s41, s41, 0x180')
            e('v_lshrrev_b32 v10, 1, v1'); e('v_lshlrev_b32 v10, 10, v10'); e('v_and_b32 v11, 1, v1'); e('v_lshl_add_u32 v10, v11, 6, v10'); e('v_add_u32 v10, s41, v10')
            e('global_load_dword v29, v10, s[16:17]')
        e('SPF1:')
        if spf & 6:
            e('s_cmp_eq_u32 s35, 1'); e('s_cbranch_scc0 SPF2')
            e('s_lshl_b32 s41, s38, 22'); e('s_mul_i32 s42, s40, 3072'); e('s_add_u32 s41, s41, s42'); e('s_and_b32 s42, s40, 8'); e('s_mul_i32 s42, s42, 3072')
            e('s_add_u32 s41, s41, s42'); e(f's_add_u32 s41, s41, {0x100000 + 0xC0000 + 3 * 8192}')
            e('v_min_u32 v10, 47, v1'); e('v_lshl_add_u32 v10, v10, 6, s41')
            if spf & 2: e('global_load_dword v29, v10, s[10:11]')
            if spf & 4: e('global_load_dword v28, v10, s[12:13]')
            e('SPF2:')
    if late == 2: e('s_cmp_lt_u32 s37, 6'); e('s_cbranch_scc0 NLATE')
    if late: e('s_waitcnt lgkmcnt(0)')
    e('NLATE:')
    for t in range(3): ld(KB + 16 + 4 * t, 's[10:11]', t == 0)
    if not late: e('s_load_dword s34, s[32:33], 0')
    e('s_cmp_lt_u32 s37, 6')
    e('s_cbranch_scc1 F_C')
    for t in range(4): ld(KB + 4 * t, 's[10:11]', False)
    e('F_C:')
    if stamps: e(f'v_writelane_b32 v{SV}, s96, 0')
    e('s_mov_b32 s48, 0xffff0000'); e(f's_mov_b32 s50, {maxtry}')
    e('v_and_b32 v14, 1, v1'); e('v_lshlrev_b32 v14, 4, v14'); e('v_mov_b32 v15, 0xffff'); e('v_lshlrev_b32 v14, v14, v15')
    e('v_bfe_u32 v15, v1, 1, 2')
    for d in range(4):
        e(f'v_cmp_eq_u32 vcc, {d}, v15'); e(f'v_cndmask_b32 v{4+d}, 0, v14, vcc')
    e('v_and_b32 v14, 1, v2'); e('v_lshlrev_b32 v14, 4, v14'); e('v_lshl_add_u32 v14, v3, 5, v14')
    e('v_mov_b32 v8, 0xff')
    e('s_cmp_lt_u32 s37, 4')
    e('s_cbranch_scc0 F_D')
    nk0 = kpre
    e(f's_waitcnt vmcnt({5+nk0})')
    for k in range(4):
        e(f'v_lshlrev_b32 v{48+2*k}, 16, v{16+k}'); e(f'v_and_b32 v{49+2*k}, s48, v{16+k}')
    e('v_pk_add_f32 v[56:57], v[48:49], v[50:51]'); e('v_pk_add_f32 v[58:59], v[52:53], v[54:55]')
    e('v_pk_add_f32 v[56:57], v[56:57], v[58:59]'); e('v_add_f32 v56, v56, v57')
    wave_sum(56, 40)
    e('v_mov_b32 v60, 0x3b000000')
    e('v_mul_f32 v62, s40, v60')
    for k in range(0, 8, 2): e(f'v_pk_add_f32 v[{48+k}:{49+k}], v[{48+k}:{49+k}], v[62:63] op_sel_hi:[1,0] neg_lo:[0,1] neg_hi:[0,1]')
    e('v_pk_mul_f32 v[56:57], v[48:49], v[48:49]')
    for k in range(2, 8, 2): e(f'v_pk_fma_f32 v[56:57], v[{48+k}:{49+k}], v[{48+k}:{49+k}], v[56:57]')
    e('v_add_f32 v56, v56, v57')
    wave_sum(56, 40)
    rbf(57, 62)
    e('v_mul_f32 v58, s40, v60'); rbf(58, 58)
    e(f'v_add_f32 v58, 0x{EPS:x}, v58'); rbf(58, 58)
    e('v_sqrt_f32 v58, v58'); rbf(58, 58)
    e('v_rcp_f32 v58, v58')
    e(f's_waitcnt vmcnt({4+nk0})')
    e('v_lshlrev_b32 v48, 16, v20'); e('v_and_b32 v49, s48, v20'); e('v_lshlrev_b32 v50, 16, v21'); e('v_and_b32 v51, s48, v21')
    for k in range(4): e(f'v_sub_f32 v{48+k}, v{48+k}, v57')
    for k in range(4): rbf(48 + k, 48 + k)
    for k in range(4): e(f'v_mul_f32 v{48+k}, v{48+k}, v58')
    for k in range(4): e(f'v_cvt_pk_bf16_f32 v{48+k}, v{48+k}, v{48+k}')
    for t in range(4):
        for d in range(4): e(f'v_and_b32 v{32+4*t+d}, v{48+t}, v{4+d}')
    e('s_lshl_b32 s40, s35, 9'); e('s_lshr_b32 s41, s35, 1'); e('s_lshl_b32 s41, s41, 6'); e('s_add_u32 s40, s40, s41'); e('v_add_u32 v10, s40, v14')
    e('v_bfe_u32 v11, v1, 2, 2'); e('v_and_b32 v16, 0x30, v9'); e('v_lshl_add_u32 v16, v2, 6, v16')
    e('v_lshl_add_u32 v17, v11, 8, v16'); e('v_add_u32 v17, s54, v17'); e('v_add_u32 v18, s55, v16')
    e('v_mul_u32_u24 v11, 0x440, v11'); e('v_add_u32 v11, v11, v16')
    e('s_mov_b32 s40, 0x00ff00ff'); e('s_mov_b32 s41, 0xff00ff00')
    for t in range(4):
        e(f's_waitcnt vmcnt({3-t+nk0})')
        e(f'v_mfma_f32_16x16x32_bf16 v[48:51], v[{32+4*t}:{35+4*t}], v[{64+4*t}:{67+4*t}], ' + ('0' if t == 0 else 'v[48:51]'))
    e('s_mov_b64 exec, s[40:41]')
    e(f'ds_write_b128 v10, v[48:51] offset:{QP}')
    e('s_mov_b64 exec, -1')
    e('s_waitcnt lgkmcnt(0)')
    stamp(1)
    e('s_cmp_lg_u32 s35, 7')
    e('s_barrier')
    e('s_cbranch_scc1 L_A')
    reduce8(11, 256)
    e(f's_add_u32 s42, s34, 0x{TAGC:x}')
    e('s_and_b32 s44, s42, 0xff'); e('s_bfe_u32 s45, s42, 0x80008'); e('s_bfe_u32 s46, s42, 0x80010'); e('s_lshr_b32 s47, s42, 24')
    e('s_mov_b32 s40, 0x000f000f'); e('s_mov_b32 s41, s40')
    reduce8b()
    for k in range(4): e(f'v_add_f32_dpp v{48+k}, v{48+k}, v{48+k} row_ror:4 {D}')
    for k in range(4): e(f'v_bfi_b32 v{48+k}, v8, s{44+k}, v{48+k}')
    e('global_store_dwordx4 v17, v[48:51], s[32:33]')
    if ncopy == 8: e('global_store_dwordx4 v17, v[48:51], s[32:33] offset:1024')
    e('s_mov_b64 exec, s[40:41]')
    e('global_store_dwordx4 v18, v[48:51], s[32:33] sc1')
    e('s_mov_b64 exec, -1')
    stamp(4)
    e('L_A:')
    e('s_barrier')
    for t in range(kpre, 3): ld(KB + 16 + 4 * t, 's[10:11]', t == 0)
    e('F_D:')
    stamp(14)
    e('s_lshl_b32 s40, s35, 9'); e('s_lshr_b32 s41, s35, 2'); e('s_lshl_b32 s42, s41, 7'); e('s_add_u32 s40, s40, s42'); e('v_add_u32 v14, s40, v14')
    e('s_movk_i32 s43, 0x880'); e('s_mov_b64 s[100:101], s[12:13]')
    e('v_and_b32 v10, 3, v1'); e('v_lshl_add_u32 v10, v2, 2, v10'); e('v_lshlrev_b32 v10, 5, v10'); e('v_and_b32 v15, 4, v1'); e('v_lshl_add_u32 v10, v15, 2, v10')
    e('v_lshrrev_b32 v15, 3, v3'); e('v_mad_u32_u24 v15, v15, s43, v10')
    e('s_lshl_b32 s40, s36, 3'); e('s_add_u32 s40, s40, s37'); e('s_lshl_b32 s52, s40, 9')
    e('s_lshl_b32 s40, s36, 13'); e('s_bfe_u32 s41, s35, 0x10001'); e('s_lshl_b32 s41, s41, 11'); e('s_add_u32 s40, s40, s41'); e('s_and_b32 s41, s35, 1'); e('s_lshl_b32 s41, s41, 7')
    e('s_add_u32 s40, s40, s41'); e(f's_add_u32 s40, s40, 0x{H1O:x}'); e('s_add_u32 s98, s32, s40'); e('s_addc_u32 s99, s33, 0')
    e('v_lshlrev_b32 v20, 4, v3')
    e('s_lshl_b32 s40, s35, 2'); e(f's_add_u32 s40, s40, {MX}'); e('v_mov_b32 v21, s40')
    e('v_mov_b32 v12, v13')
    W(1)
    e('s_waitcnt lgkmcnt(0)')
    e(f's_add_u32 s34, s34, 0x{TAGC:x}')
    e('s_and_b32 s44, s34, 0xff'); e('s_bfe_u32 s45, s34, 0x80008'); e('s_bfe_u32 s46, s34, 0x80010'); e('s_lshr_b32 s47, s34, 24')
    if pdirty:
        e('s_cmp_lg_u32 s35, 7'); e('s_cbranch_scc1 NOPD')
        e('s_not_b32 s40, s34')
        for k in range(4): e(f'v_mov_b32 v{48+k}, s40')
        e(f's_add_u32 s42, s52, 0x{H2O:x}'); e('v_add_u32 v10, s42, v9')
        e('s_lshr_b32 s42, s52, 5'); e(f's_add_u32 s42, s42, 0x{H2LO:x}'); e('v_mov_b32 v11, s42')
        e('v_cmp_gt_u32 vcc, 32, v1'); e('v_cndmask_b32 v10, v11, v10, vcc')
        e('s_mov_b32 exec_hi, 1')
        e('global_store_dwordx4 v10, v[48:51], s[32:33]')
        e('s_mov_b64 exec, -1')
        e('NOPD:')
    e(f's_mov_b32 s49, {0 if forcefb else ncopy - 1}')
    e('s_cmp_lt_u32 s37, 4')
    if kbar: e('s_barrier')
    def vq(a, b):
        for t in range(a, b): ld(VB + 16 + 4 * t, 's[100:101]', t == 0)
    e('s_mov_b32 s51, 0')
    if nq:
        e('s_cbranch_scc0 V_NQ')
        e('s_cmp_lt_u32 s35, 4')
        e('s_cbranch_scc0 V_NQ')
        vq(0, vpre)
        e(f's_mov_b32 s51, {nq}')
        e('s_branch FETCH2')
    e('V_NQ:')
    vq(0, 3)
    e('s_cmp_lt_u32 s37, 4')
    e('s_cbranch_scc1 FETCH')
    e('s_cmp_lt_u32 s37, 6')
    e('s_cbranch_scc0 V_A')
    e('s_lshl_b32 s62, s35, 13'); e(f's_add_u32 s62, s62, {WB}')
    e('s_lshr_b32 s40, s35, 2'); e('s_and_b32 s41, s35, 3')
    e('s_lshl_b32 s42, s38, 19'); e('s_lshl_b32 s43, s40, 18'); e('s_add_u32 s42, s42, s43')
    e('s_lshl_b32 s43, s41, 15'); e('s_add_u32 s42, s42, s43'); e('s_and_b32 s43, s39, 7'); e('s_lshl_b32 s43, s43, 7'); e('s_add_u32 s42, s42, s43')
    e('v_lshrrev_b32 v16, 3, v1'); e('v_and_b32 v17, 0x70, v9'); e('v_lshl_add_u32 v16, v16, 10, v17'); e('v_add_u32 v16, s42, v16')
    for t in range(8):
        g, hb = t & 3, t >> 2
        e(f's_add_u32 m0, s62, {t << 10}')
        if t: e(f'v_xor_b32 v17, 0x{g*32 | g*8192 | hb << 17:x}, v16')
        e(f'global_load_lds_dwordx4 v{17 if t else 16}, s[16:17] nt')
    e('s_branch FETCH')
    e('V_A:')
    for t in range(4):
        ld(VB + 4 * t, 's[12:13]', False)
    e('FETCH:')
    stamp(15)
    e('s_cmp_lt_u32 s35, 4')
    e('s_cbranch_scc0 QDONE')
    e('FETCH2:')
    qtry()
    e('s_lshl_b32 s42, s35, 6'); e('v_mov_b32 v11, s42')
    QA = list(range(64, 96, 2)); QB = list(range(8, 32, 2)) + list(range(56, 64, 2))
    e('FCHK:')
    e('s_waitcnt lgkmcnt(0)')
    for k, r in enumerate(QA + QB): e(f's_xor_b64 s[{r}:{r+1}], s[{r}:{r+1}], s[{44+2*(k&1)}:{45+2*(k&1)}]')
    e('s_or_b64 s[40:41], s[64:65], s[66:67]')
    for k, r in enumerate((QA + QB)[2:]):
        e(f's_or_b64 s[40:41], s[40:41], s[{r}:{r+1}]')
        if k < 16: e(f'v_mov_b64 v[{32+2*k}:{33+2*k}], s[{QA[k]}:{QA[k]+1}]')
        else: e(f'v_pk_add_f32 v[{2*k}:{1+2*k}], s[{QB[k-16]}:{QB[k-16]+1}], v[{2*k}:{1+2*k}]')
    e('s_or_b32 s40, s40, s41'); e('s_and_b32 s40, s40, 0xff')
    if forcefb: e('s_cmp_eq_u32 s49, 0')
    e('s_cbranch_scc0 FOKQ')
    e('s_sub_u32 s49, s49, 1')
    e('s_cbranch_scc1 QFB')
    if qsleep: e(f's_sleep {qsleep}')
    qtry()
    if nq:
        e('s_sub_u32 s51, s51, 1'); e('s_cselect_b32 s51, 0, s51'); e('s_cbranch_scc1 FCHK')
        e('s_cmp_eq_u32 s51, 0'); e('s_cbranch_scc0 FCHK')
        vq(vpre, 3)
    e('s_branch FCHK')
    P(1)
    e('FOKQ:')
    for k in (14, 15): e(f'v_pk_add_f32 v[{32+2*k}:{33+2*k}], s[{QB[k]}:{QB[k]+1}], v[{32+2*k}:{33+2*k}]')
    e('s_mov_b64 exec, 1')
    for q in range(4):
        for k in range(4 * q, 4 * q + 4): e(f'v_cvt_pk_bf16_f32 v{32+k}, v{32+2*k}, v{33+2*k}')
        e(f'ds_write_b128 v11, v[{32+4*q}:{35+4*q}] offset:{QF+16*q}')
    e('s_mov_b64 exec, -1')
    if nq:
        e('s_cmp_eq_u32 s51, 0'); e('s_cbranch_scc1 QDONE')
        vq(vpre, 3)
    e('QDONE:')
    if stamps:
        e(f'v_readlane_b32 s40, v{SV}, 0'); e('s_add_u32 s41, s49, 1'); e('s_mul_i32 s41, s41, 100'); e('s_add_u32 s40, s40, s41'); e(f'v_writelane_b32 v{SV}, s40, 2')
    e(f'v_mov_b32 v63, 0x{LOG2E:x}')
    for k in (52, 53, 54, 55, 61): e(f'v_mov_b32 v{k}, 0xff800000')
    e('v_and_b32 v10, 0x70, v9'); e('v_lshl_add_u32 v10, v2, 7, v10')
    e(f's_add_u32 s42, s52, 0x{H2O:x}'); e('v_add_u32 v10, s42, v10'); e(f'v_add_u32 v11, 0x{COPYB:x}, v10')
    e('s_lshr_b32 s42, s52, 5'); e(f's_add_u32 s42, s42, 0x{H2LO:x}')
    e('v_mov_b32 v16, s42'); e(f'v_add_u32 v17, 0x{COPYB:x}, v16')
    e('v_and_b32 v18, 7, v1'); e('v_lshlrev_b32 v18, 2, v18'); e('v_and_b32 v19, 8, v1'); e('v_lshlrev_b32 v19, 1, v19')
    e('s_mov_b32 s40, 0x0f0f0f0f'); e('s_mov_b32 s41, s40'); e('s_mov_b32 s42, 0x00ff00ff'); e('s_mov_b32 s43, s42')
    e('s_cmp_lt_u32 s37, 4')
    e('s_waitcnt lgkmcnt(0)')
    for k in range(36, 40): e(f'v_mov_b32 v{k}, s34')
    stamp(3)
    e('s_barrier')
    e(f'ds_read_b128 v[48:51], v20 offset:{QF}')
    e('s_cbranch_scc0 QSK')
    e('s_waitcnt vmcnt(3)')
    e('QSK:')
    e('s_waitcnt vmcnt(11) lgkmcnt(0)')
    e('s_load_dwordx16 s[8:23], s[0:1], 0'); e('s_load_dwordx8 s[24:31], s[0:1], 64')
    def dots(r, kb, n):
        for k in range(4):
            for t in range(n): e(f'v_dot2_f32_bf16 v{r+t}, v{kb+4*t+k}, v{48+k}, ' + ('0' if k == 0 else f'v{r+t}'))
    e('s_cmp_lt_u32 s37, 6')
    dots(58, KB + 16, 3)
    e('s_cbranch_scc1 SMX')
    e('s_waitcnt vmcnt(7)')
    dots(52, KB, 4)
    e('SMX:')
    P(1)
    e('s_nop 1')
    for r in (58, 52):
        e(f'v_add_f32_dpp v{r}, v{r}, v{r} row_ror:8 row_mask:0xf bank_mask:0x3')
        e(f'v_add_f32_dpp v{r+1}, v{r+1}, v{r+1} row_ror:8 row_mask:0xf bank_mask:0x3')
    for r in (58, 52):
        e(f'v_add_f32_dpp v{r}, v{r+2}, v{r+2} row_ror:8 row_mask:0xf bank_mask:0xc')
        e(f'v_add_f32_dpp v{r+1}, v{r+3}, v{r+3} row_ror:8 row_mask:0xf bank_mask:0xc')
    for r in (58, 52): e(f'v_add_f32_dpp v{r}, v{r}, v{r} row_shl:4 row_mask:0xf bank_mask:0x5')
    for r in (58, 52): e(f'v_add_f32_dpp v{r}, v{r+1}, v{r+1} row_shr:4 row_mask:0xf bank_mask:0xa')
    for r in (58, 52): e(f'v_add_f32_dpp v{r}, v{r}, v{r} quad_perm:[1,0,3,2] {D}')
    for r in (58, 52): e(f'v_add_f32_dpp v{r}, v{r}, v{r} quad_perm:[2,3,0,1] {D}')
    rbf(58, 58); rbf(52, 52); e(f'v_mul_f32 v58, 0x{SCALE:x}, v58'); e(f'v_mul_f32 v52, 0x{SCALE:x}, v52'); rbf(58, 58); rbf(52, 52)
    e('v_max_f32 v54, v52, v58')
    e(f'v_max_f32_dpp v54, v54, v54 row_ror:8 {D}'); e(f'v_max_f32_dpp v54, v54, v54 row_ror:4 {D}')
    e('v_mov_b32 v53, v54'); e('v_permlane32_swap_b32 v53, v54'); e('v_max_f32 v54, v53, v54')
    e('v_mov_b32 v53, v54'); e('v_permlane16_swap_b32 v53, v54'); e('v_max_f32 v54, v53, v54')
    e('v_sub_f32 v58, v58, v54'); e('v_sub_f32 v52, v52, v54'); e('v_mul_f32 v58, v58, v63'); e('v_mul_f32 v52, v52, v63')
    e('v_exp_f32 v58, v58'); e('v_exp_f32 v52, v52')
    e('v_cvt_pk_bf16_f32 v57, v58, v58'); e('v_cvt_pk_bf16_f32 v56, v52, v52')
    e('v_add_f32 v55, v58, v52')
    def amask(t):
        s, b = (56, 4 * t) if t < 4 else (57, 4 * (t - 4))
        for d in range(4): e(f'v_and_b32_dpp v{KB+4*t+d}, v{s}, v{4+d} row_newbcast:{b} {D}')
    def pv(t): e(f'v_mfma_f32_16x16x32_bf16 v[44:47], v[{KB+4*t}:{KB+3+4*t}], v[{VB+4*t}:{VB+3+4*t}], ' + ('0' if t == 4 else 'v[44:47]'))
    amask(4)
    e(f'v_add_f32_dpp v55, v55, v55 row_ror:8 {D}')
    amask(5)
    e(f'v_add_f32_dpp v55, v55, v55 row_ror:4 {D}')
    e('v_mov_b32 v53, v55')
    amask(6)
    e('v_permlane32_swap_b32 v53, v55'); e('v_add_f32 v55, v53, v55'); e('v_mov_b32 v53, v55')
    e('v_permlane16_swap_b32 v53, v55'); e('v_add_f32 v55, v53, v55')
    e('s_mov_b64 exec, 1'); e('ds_write2_b32 v21, v54, v55 offset0:0 offset1:8'); e('s_mov_b64 exec, -1')
    stamp(5)
    e('s_cbranch_scc1 NOTA')
    for k, t in enumerate((4, 5, 6, 0, 1, 2, 3)):
        if k < 4: amask(k)
        e(f's_waitcnt vmcnt({6-k})'); pv(t)
    e('s_nop 5')
    e('s_branch PVD')
    P(1)
    e('NOTA:')
    e('s_cmp_lt_u32 s37, 4')
    e('s_cbranch_scc1 LQ2')
    e('s_waitcnt vmcnt(8)')
    pv(4); pv(5); pv(6)
    e('s_nop 5')
    e('s_branch PVD')
    e('LQ2:')
    for t in range(3):
        e(f's_waitcnt vmcnt({2-t})'); pv(4 + t)
    e('PVD:')
    e('s_mov_b64 exec, 0xffffffff')
    e(f'ds_write_b128 v14, v[44:47] offset:{QP}')
    e('s_mov_b64 exec, -1')
    e('s_cmp_lg_u32 s35, 7')
    e('s_waitcnt lgkmcnt(0)')
    stamp(7)
    e('s_barrier')
    e('s_cbranch_scc1 L_LSE')
    e(f'ds_read_b128 v[40:43], v19 offset:{MX}')
    e('v_mov_b32 v34, v63')
    reduce8(15)
    e('s_waitcnt lgkmcnt(4)')
    e('v_max3_f32 v32, v40, v41, v42'); e('v_max_f32 v32, v32, v43')
    e(f'v_max_f32_dpp v32, v32, v32 row_ror:8 {D}')
    for k in (40, 42): e(f'v_pk_add_f32 v[{k}:{k+1}], v[{k}:{k+1}], v[32:33] op_sel_hi:[1,0] neg_lo:[0,1] neg_hi:[0,1]')
    for k in (40, 42): e(f'v_pk_mul_f32 v[{k}:{k+1}], v[{k}:{k+1}], v[34:35] op_sel_hi:[1,0]')
    for k in range(40, 44): e(f'v_exp_f32 v{k}, v{k}')
    e('s_waitcnt lgkmcnt(0)')
    for h in (0, 2): e(f'v_pk_mul_f32 v[{48+h}:{49+h}], v[{48+h}:{49+h}], v[40:41] op_sel_hi:[1,0]')
    for h in (0, 2): e(f'v_pk_mul_f32 v[{56+h}:{57+h}], v[{56+h}:{57+h}], v[42:43] op_sel_hi:[1,0]')
    for h in (0, 2): e(f'v_pk_fma_f32 v[{48+h}:{49+h}], v[{52+h}:{53+h}], v[40:41], v[{48+h}:{49+h}] op_sel:[0,1,0]')
    for h in (0, 2): e(f'v_pk_fma_f32 v[{56+h}:{57+h}], v[{60+h}:{61+h}], v[42:43], v[{56+h}:{57+h}] op_sel:[0,1,0]')
    for h in (0, 2): e(f'v_pk_add_f32 v[{48+h}:{49+h}], v[{48+h}:{49+h}], v[{56+h}:{57+h}]')
    for k in range(4): e(f'v_add_f32_dpp v{48+k}, v{48+k}, v{48+k} row_ror:8 {D}')
    e('s_mov_b64 exec, s[40:41]')
    e('v_cvt_pk_bf16_f32 v38, v48, v49'); e('v_cvt_pk_bf16_f32 v39, v50, v51')
    e('s_not_b64 exec, exec')
    e('v_cvt_pk_bf16_f32 v36, v48, v49'); e('v_cvt_pk_bf16_f32 v37, v50, v51')
    e('s_mov_b64 exec, s[42:43]')
    e('global_store_dwordx4 v10, v[36:39], s[32:33]')
    e('global_store_dwordx4 v11, v[36:39], s[32:33] sc1')
    e('s_mov_b64 exec, -1')
    stamp(8)
    e('s_branch L_B5')
    P(1)
    e('L_LSE:')
    e('s_cmp_lg_u32 s35, 0')
    e('s_cbranch_scc1 L_B5')
    e(f'ds_read_b32 v48, v18 offset:{MX}'); e(f'ds_read_b32 v49, v18 offset:{MX+32}')
    e('s_waitcnt lgkmcnt(1)')
    e(f'v_max_f32_dpp v36, v48, v48 quad_perm:[1,0,3,2] {D}')
    e(f'v_max_f32_dpp v36, v36, v36 quad_perm:[2,3,0,1] {D}')
    e(f'v_max_f32_dpp v36, v36, v36 row_half_mirror {D}')
    e('v_sub_f32 v48, v48, v36'); e('v_mul_f32 v48, v48, v63'); e('v_exp_f32 v48, v48')
    e('s_waitcnt lgkmcnt(0)')
    e('v_mul_f32 v37, v48, v49')
    e(f'v_add_f32_dpp v37, v37, v37 quad_perm:[1,0,3,2] {D}')
    e(f'v_add_f32_dpp v37, v37, v37 quad_perm:[2,3,0,1] {D}')
    e(f'v_add_f32_dpp v37, v37, v37 row_half_mirror {D}')
    e('s_mov_b64 exec, 1')
    e('global_store_dwordx4 v16, v[36:39], s[32:33]')
    e('global_store_dwordx4 v17, v[36:39], s[32:33] sc1')
    e('s_mov_b64 exec, -1')
    stamp(6)
    e('L_B5:')
    e('s_lshr_b32 s40, s37, 1')
    e('s_cmp_eq_u32 s40, 2')
    e('s_barrier')
    e('s_cbranch_scc0 NOTOP')

    e('s_lshr_b32 s40, s35, 2'); e('s_and_b32 s41, s35, 3')
    e('s_lshl_b32 s62, s35, 13'); e(f's_add_u32 s62, s62, {WB}')
    e('v_and_b32 v26, 1, v2'); e('v_lshlrev_b32 v24, 2, v26'); e('v_and_b32 v25, 7, v3'); e('v_xor_b32 v24, v24, v25')
    e('v_lshrrev_b32 v27, 1, v2'); e('v_lshl_add_u32 v24, v27, 3, v24'); e('v_lshlrev_b32 v24, 4, v24')
    e('s_lshl_b32 s42, s38, 1'); e('s_add_u32 s42, s42, s40')
    e('s_lshl_b32 s43, s42, 8'); e(f's_add_u32 s43, s43, 0x{H2LO:x}'); e('v_add_u32 v24, s43, v24')
    e('s_lshl_b32 s43, s42, 13'); e('s_lshl_b32 s42, s41, 7'); e('s_add_u32 s43, s43, s42'); e(f's_add_u32 s43, s43, 0x{H2O:x}')
    e('v_lshlrev_b32 v25, 9, v3'); e('v_lshl_add_u32 v25, v2, 4, v25'); e('v_add_u32 v25, s43, v25')
    e('v_lshl_add_u32 v27, v26, 1, v27'); e('v_lshl_add_u32 v27, v27, 4, v3'); e('v_lshlrev_b32 v27, 2, v27')
    e('s_lshl_b32 s42, s38, 11'); e('s_and_b32 s43, s39, 7'); e('s_lshl_b32 s43, s43, 8'); e('s_add_u32 s42, s42, s43'); e(f's_add_u32 s42, s42, 0x{H3O:x}')
    e('v_add_u32 v27, s42, v27')
    e('v_and_b32 v16, 3, v3'); e('v_lshlrev_b32 v16, 3, v16'); e('v_lshrrev_b32 v28, v16, s34')
    e('v_lshrrev_b32 v17, 2, v3'); e('v_lshl_add_u32 v16, v17, 7, v16'); e('v_mul_u32_u24 v17, 1056, v2'); e('v_add3_u32 v16, v16, v17, s62')
    for cg in range(1, 4): e(f'v_xor_b32 v{16+cg}, {32*cg}, v16')
    e('v_lshlrev_b32 v29, 2, v1'); e('s_lshl_b32 s42, s35, 8'); e('v_add_u32 v26, s42, v29')
    for r in range(8): e(f'v_mov_b32 v{56+r}, 0')
    e(f's_mov_b32 s49, {dual}')
    W(2)
    def opoll():
        e('global_load_dwordx4 v[48:51], v24, s[32:33] sc1')
        e('global_load_dwordx4 v[64:67], v25, s[32:33] sc1')
        e('global_load_dwordx4 v[68:71], v25, s[32:33] offset:64 sc1')
    opoll()
    e('s_waitcnt vmcnt(3)')
    for hb in range(2):
        for cg in range(4):
            b = BB + (hb * 4 + cg) * 4
            for a in range(2):
                e(f'ds_read_b64_tr_b16 v[{b+2*a}:{b+2*a+1}], v{16+cg} offset:{hb*4096+a*512}')
    stamp(9)
    e('s_branch OCHK')
    e('OPOLL:')
    e('s_sub_u32 s49, s49, 1')
    e('s_cmp_lg_u32 s49, 0')
    e('s_cbranch_scc1 OP2')
    e(f'v_add_u32 v24, 0x{COPYB:x}, v24'); e(f'v_add_u32 v25, 0x{COPYB:x}, v25')
    e('OP2:')
    if osleep: e(f's_sleep {osleep}')
    if mrep & 1:
        e('s_mov_b64 exec, vcc'); e('global_load_dwordx4 v[48:51], v24, s[32:33] sc1')
        e('s_mov_b64 exec, s[40:41]'); e('global_load_dwordx4 v[64:67], v25, s[32:33] sc1')
        e('global_load_dwordx4 v[68:71], v25, s[32:33] offset:64 sc1')
        e('s_mov_b64 exec, -1')
    else: opoll()
    e('OCHK:')
    e('s_waitcnt vmcnt(0)')
    e('v_cmp_ne_u32 s[40:41], s34, v64'); e('v_cmp_ne_u32 s[42:43], s34, v71'); e('v_cmp_ne_u32 vcc, s34, v51')
    for k in range(4): e(f'v_mov_b32_dpp v{56+k}, v{66+k} quad_perm:[0,1,2,3] row_mask:0xf bank_mask:0x3')
    e('s_or_b64 s[40:41], s[40:41], s[42:43]'); e('s_or_b64 s[42:43], vcc, s[40:41]')
    e('s_cbranch_scc0 OOK')
    e('s_sub_u32 s50, s50, 1')
    e('s_cbranch_scc0 OPOLL')
    P(2)
    e('OOK:')
    stamp(10)
    def omf(hb, cg):
        b = BB + (hb * 4 + cg) * 4; d = 80 + cg * 4
        e(f'v_mfma_f32_16x16x32_bf16 v[{d}:{d+3}], v[{56+4*hb}:{59+4*hb}], v[{b}:{b+3}], ' + (f'v[{d}:{d+3}]' if hb else '0'))
    e('s_waitcnt lgkmcnt(0)')
    omf(0, 0)
    e(f'v_max_f32_dpp v52, v48, v48 quad_perm:[1,0,3,2] {D}')
    for k in range(2): e(f'v_mov_b32_dpp v{60+k}, v{66+k} quad_perm:[0,1,2,3] row_mask:0xf bank_mask:0xc')
    omf(0, 1)
    e(f'v_max_f32_dpp v52, v52, v52 quad_perm:[2,3,0,1] {D}')
    for k in range(2, 4): e(f'v_mov_b32_dpp v{60+k}, v{66+k} quad_perm:[0,1,2,3] row_mask:0xf bank_mask:0xc')
    omf(0, 2)
    e(f'v_max_f32_dpp v52, v52, v52 row_half_mirror {D}')
    e('v_sub_f32 v52, v48, v52')
    omf(0, 3)
    e(f'v_mul_f32 v52, 0x{LOG2E:x}, v52'); e('v_exp_f32 v52, v52')
    omf(1, 0)
    e('v_mul_f32 v53, v52, v49')
    omf(1, 1)
    e(f'v_mov_b32_dpp v72, v52 row_newbcast:0 {D}')
    e(f'v_add_f32_dpp v53, v53, v53 quad_perm:[1,0,3,2] {D}')
    omf(1, 2)
    e(f'v_mov_b32_dpp v73, v52 row_newbcast:1 {D}')
    e(f'v_add_f32_dpp v53, v53, v53 quad_perm:[2,3,0,1] {D}')
    omf(1, 3)
    e(f'v_mov_b32_dpp v74, v52 row_newbcast:2 {D}')
    e(f'v_add_f32_dpp v53, v53, v53 row_half_mirror {D}')
    e(f'v_mov_b32_dpp v75, v52 row_newbcast:3 {D}')
    e('v_rcp_f32 v53, v53')
    for cg in range(4):
        e(f'v_pk_mul_f32 v[{32+2*cg}:{33+2*cg}], v[{80+4*cg}:{81+4*cg}], v[72:73]')
        e(f'v_pk_fma_f32 v[{32+2*cg}:{33+2*cg}], v[{82+4*cg}:{83+4*cg}], v[74:75], v[{32+2*cg}:{33+2*cg}]')
        e(f'v_add_f32 v{40+cg}, v{32+2*cg}, v{33+2*cg}')
        if cg & 1: e(f'v_pk_mul_f32 v[{39+cg}:{40+cg}], v[{39+cg}:{40+cg}], v[52:53] op_sel:[0,1]')
        if cg == 2: e('v_permlane32_swap_b32 v40, v41'); e('v_add_f32 v40, v40, v41')
    e('s_cmp_lg_u32 s35, 0')
    e('v_permlane32_swap_b32 v42, v43')
    e('v_add_f32 v42, v42, v43')
    e('v_permlane16_swap_b32 v40, v42')
    e('v_add_f32 v40, v40, v42')
    e(f'ds_write_b32 v26, v40 offset:{RED}')
    e('s_waitcnt lgkmcnt(0)')
    stamp(11)
    e('s_barrier')
    e('s_cbranch_scc1 FIN')
    for k in range(4): e(f'ds_read2st64_b32 v[{48+2*k}:{49+2*k}], v29 offset0:{RED//256+2*k} offset1:{RED//256+2*k+1}')
    e('s_waitcnt lgkmcnt(2)')
    e('v_pk_add_f32 v[48:49], v[48:49], v[50:51]')
    e('s_waitcnt lgkmcnt(0)')
    e('v_pk_add_f32 v[52:53], v[52:53], v[54:55]')
    e('v_pk_add_f32 v[48:49], v[48:49], v[52:53]'); e('v_add_f32 v48, v48, v49')
    e('v_bfi_b32 v48, v8, v28, v48')
    e('global_store_dword v27, v48, s[32:33] sc1')
    stamp(12)
    e('FIN:')
    if stamps:
        e('s_cmp_eq_u32 s35, 0'); e('s_cselect_b32 s41, 0, 128'); e('s_cbranch_scc1 FL'); e('s_cmp_eq_u32 s35, 7'); e('s_cbranch_scc0 END')
        e('FL:'); e('s_mov_b64 exec, 0xffff')
        e('s_lshl_b32 s40, s2, 8'); e('s_add_u32 s40, s40, s41'); e('s_add_u32 s40, s40, 0x8000000'); e('v_lshlrev_b32 v24, 3, v1'); e('v_add_u32 v24, s40, v24')
        e(f'v_mov_b32 v{SV+1}, 0'); e(f'global_store_dwordx2 v24, v[{SV}:{SV+1}], s[32:33]')
    e('END:')
    e('s_endpgm')
    P(2)

    e('QFB:')
    e('s_lshl_b32 s40, s36, 10'); e('s_lshl_b32 s41, s35, 7'); e('s_add_u32 s40, s40, s41'); e(f's_add_u32 s40, s40, 0x{H1C:x}')
    e('v_and_b32 v51, 31, v1'); e('v_lshl_add_u32 v10, v51, 2, s40')
    e('v_and_b32 v50, 3, v3'); e('v_lshlrev_b32 v50, 3, v50'); e('v_lshrrev_b32 v50, v50, s34'); e('v_and_b32 v50, 0xff, v50')
    e('v_lshl_add_u32 v11, v51, 1, v11')
    e('QFB1:')
    e('global_load_dword v48, v10, s[32:33] sc1')
    e('global_load_dword v49, v10, s[32:33] offset:512 sc1')
    e('s_waitcnt vmcnt(0)')
    e('v_xor_b32 v48, v48, v50'); e('v_xor_b32 v49, v49, v50'); e('v_or_b32 v51, v48, v49'); e('v_and_b32 v51, 0xff, v51')
    e('v_cmp_ne_u32 vcc, 0, v51')
    e('s_nop 4')
    e('s_cbranch_vccz QFB2')
    e('s_sub_u32 s50, s50, 1')
    e('s_cbranch_scc0 QFB1')
    e('QFB2:')
    e('v_add_f32 v48, v48, v49'); e('v_cvt_pk_bf16_f32 v48, v48, v48')
    e(f'ds_write_b16 v11, v48 offset:{QF}')
    e('s_branch QDONE')

    P(1)
    e('NOTOP:')
    e('s_min_u32 s40, s38, 3'); e('s_mul_i32 s41, s38, 5'); e('s_add_u32 s40, s40, s41')
    e('s_cmp_lt_u32 s37, 4')
    e('s_cbranch_scc0 NOTQ')
    if w2pf:
        e('s_cmp_lt_u32 s35, 4'); e('s_cbranch_scc1 PFW1')
        e('s_cmp_eq_u32 s35, 7'); e('s_cbranch_scc1 FIN')
        e('s_lshl_b32 s40, s40, 15'); e('s_mul_i32 s41, s39, 3'); e('s_add_u32 s41, s41, s35'); e('s_sub_u32 s41, s41, 4'); e('s_lshl_b32 s41, s41, 12'); e('s_add_u32 s40, s40, s41')
        e(f's_min_u32 s40, s40, {1376*1024-4096}')
        e('v_lshl_add_u32 v16, v1, 6, s40')
        e('global_load_dword v48, v16, s[24:25]')
        e('s_waitcnt vmcnt(0)')
        e('s_branch FIN')
        e('PFW1:')
        e('s_lshl_b32 s41, s39, 2'); e('s_add_u32 s41, s41, s35'); e('s_mul_i32 s41, s41, 8*2752'); e('s_lshl_b32 s40, s40, 6'); e('s_add_u32 s40, s40, s41')
        e('v_lshrrev_b32 v16, 3, v1'); e('v_mul_u32_u24 v16, 2752, v16'); e('v_and_b32 v17, 7, v1'); e('v_min_u32 v17, 5, v17'); e('v_lshl_add_u32 v16, v17, 6, v16')
        e('v_add_u32 v16, s40, v16'); e(f'v_min_u32 v16, {512*2752-4}, v16')
        e('global_load_dword v48, v16, s[20:21]')
        e('s_waitcnt vmcnt(0)')
    e('s_branch FIN')
    e('NOTQ:')
    e('s_cmp_lt_u32 s2, 235')
    e('s_cbranch_scc0 FIN')
    e('s_sub_u32 s41, s39, 24'); e('s_add_u32 s53, s40, s41')
    e('s_lshl_b32 s62, s35, 12'); e(f's_add_u32 s62, s62, {WB}')
    e('v_and_b32 v24, 3, v3'); e('v_lshrrev_b32 v16, 2, v1'); e('v_lshlrev_b32 v17, 4, v24')
    e('v_lshrrev_b32 v23, 2, v3'); e('v_lshlrev_b32 v23, 6, v23'); e('v_lshl_add_u32 v23, v2, 9, v23')
    e('v_lshl_add_u32 v23, v24, 3, v23'); e('v_add_u32 v23, s62, v23')
    e('s_and_b32 s54, s53, 1')
    e('s_mul_i32 s40, s35, 64*2752'); e('s_lshl_b32 s41, s53, 6'); e('s_add_u32 s40, s40, s41')
    e('s_movk_i32 s42, 2752')
    e('v_mad_u32_u24 v16, v16, s42, v17')
    e('s_mul_i32 s41, s54, 32*2752'); e('s_add_u32 s42, s40, s41'); e('s_sub_u32 s40, s40, s41'); e(f's_add_u32 s40, s40, {32*2752}')
    e('v_add_u32 v18, s40, v16'); e('v_add_u32 v16, s42, v16')
    e(f'v_add_u32 v17, {16*2752}, v16'); e(f'v_add_u32 v19, {16*2752}, v18')
    e('s_lshl_b32 s43, s54, 11'); e('s_add_u32 s62, s62, s43')
    for q in range(4): dma(q)
    e('v_lshrrev_b32 v24, 3, v1')
    e('v_and_b32 v25, 7, v1')
    e('v_lshlrev_b32 v26, 12, v24'); e('v_lshl_add_u32 v26, v25, 4, v26')
    e('s_lshl_b32 s40, s53, 15'); e('s_lshl_b32 s41, s35, 7'); e('s_add_u32 s40, s40, s41'); e('v_add_u32 v26, s40, v26')
    for t in range(4): e(f'global_load_dwordx4 v[{112+4*t}:{115+4*t}], v26, s[24:25] offset:{1024*t} nt')
    e('v_sub_u32 v27, 7, v25'); e('v_min_u32 v27, v27, v25'); e('v_lshl_add_u32 v27, v24, 2, v27')
    e('s_lshl_b32 s41, s53, 6'); e('v_lshl_add_u32 v28, v27, 1, s41')
    e('v_lshrrev_b32 v29, 2, v25'); e('v_lshlrev_b32 v29, 4, v29'); e('v_lshl_add_u32 v27, v27, 5, v29')
    e('v_lshrrev_b32 v29, 3, v3'); e('v_lshlrev_b32 v29, 6, v29'); e('v_lshl_add_u32 v29, v2, 4, v29')
    e('v_and_b32 v30, 1, v3'); e('v_lshl_add_u32 v29, v30, 3, v29'); e('v_and_b32 v31, 4, v3'); e('v_add_u32 v29, v29, v31')
    e('s_lshl_b32 s41, s35, 7'); e('v_add_u32 v29, s41, v29')
    e('v_lshrrev_b32 v31, 1, v3'); e('v_lshlrev_b32 v31, 11, v31'); e('v_lshl_add_u32 v31, v2, 5, v31'); e('v_lshl_add_u32 v31, v30, 4, v31')
    e('s_lshl_b32 s41, s35, 8'); e(f's_add_u32 s41, s41, 0x{H3O:x}'); e('v_add_u32 v31, s41, v31')
    e('global_load_ushort v32, v28, s[22:23]')
    e('global_load_dword v33, v29, s[8:9]')
    e('v_and_b32 v34, 3, v1'); e('v_lshl_add_u32 v34, v34, 2, v2'); e('s_and_b32 s41, s53, 31'); e('s_lshl_b32 s41, s41, 5'); e('v_lshl_add_u32 v34, v34, 1, s41')
    e('global_load_ushort v35, v34, s[26:27]')
    e('s_lshl_b32 s41, s35, 2'); e('v_lshl_add_u32 v36, v3, 5, s41')
    e(f'v_mov_b32 v37, {DUM-RED}'); e('v_cmp_gt_u32 vcc, 16, v1'); e('v_cndmask_b32 v36, v37, v36, vcc')
    e('v_lshrrev_b32 v37, 3, v3'); e('v_lshl_add_u32 v37, v37, 5, s41')
    e('v_and_b32 v38, 3, v1'); e('v_lshlrev_b32 v38, 4, v38')
    e('v_and_b32 v39, 1, v2'); e('v_lshlrev_b32 v39, 4, v39'); e('v_lshl_add_u32 v39, v25, 5, v39')
    e('v_lshrrev_b32 v40, 1, v2'); e('v_lshl_add_u32 v39, v40, 3, v39')
    e('s_lshl_b32 s40, s53, 11'); e('s_lshl_b32 s41, s35, 8'); e('s_add_u32 s40, s40, s41'); e(f's_add_u32 s40, s40, 0x{H4O:x}'); e('v_add_u32 v39, s40, v39')
    e('v_lshlrev_b32 v40, 4, v40'); e('v_lshrrev_b32 v40, v40, s34'); e('v_lshrrev_b32 v41, 8, v40')
    e('v_lshrrev_b32 v42, 2, v1'); e('v_lshlrev_b32 v42, 11, v42'); e('v_add_u32 v42, v42, v38')
    e('s_lshl_b32 s40, s53, 6'); e(f's_add_u32 s40, s40, 0x{H4O:x}'); e('v_add_u32 v42, s40, v42')
    e('v_add_u32 v43, 0x8000, v42'); e('v_add_u32 v44, 0x10000, v42')
    for d in range(4): e(f'v_mov_b32 v{48+d}, 0x3f803f80')
    W(4)
    e('s_waitcnt vmcnt(7)')
    for u in range(2):
        for cg in range(2):
            b = BB + (u * 2 + cg) * 4
            for a in range(2):
                e(f'ds_read_b64_tr_b16 v[{b+2*a}:{b+2*a+1}], v23 offset:{a*2048+u*256+cg*32}')
    e('s_waitcnt lgkmcnt(0)')
    e(f'v_mfma_f32_16x16x32_bf16 v[80:83], v[48:51], v[{BB}:{BB+3}], 0')
    e(f'v_mfma_f32_16x16x32_bf16 v[84:87], v[48:51], v[{BB+4}:{BB+7}], 0')
    e(f'v_mfma_f32_16x16x32_bf16 v[80:83], v[48:51], v[{BB+8}:{BB+11}], v[80:83]')
    e(f'v_mfma_f32_16x16x32_bf16 v[84:87], v[48:51], v[{BB+12}:{BB+15}], v[84:87]')
    e(f'ds_write_b32 v36, v80 offset:{QP}'); e(f'ds_write_b32 v36, v84 offset:{QP+512}')
    e('s_waitcnt lgkmcnt(0)')
    e('s_barrier')
    e(f'ds_read_b128 v[52:55], v27 offset:{QP}')
    e('s_waitcnt lgkmcnt(0)')
    e('v_add_f32 v52, v52, v53'); e('v_add_f32 v54, v54, v55'); e('v_add_f32 v45, v52, v54')
    e(f'v_add_f32_dpp v45, v45, v45 row_half_mirror {D}')
    e('v_mov_b32 v60, 0x3b000000')
    stamp(9)
    if h4pre or outpre:
        e('s_cmp_lg_u32 s35, 0'); e('s_cbranch_scc1 NOH4')
        if h4pre:
            e('global_load_dword v88, v42, s[32:33] sc1'); e('global_load_dword v89, v43, s[32:33] sc1'); e('global_load_dword v90, v44, s[32:33] sc1')
        if outpre: e('global_load_ushort v91, v34, s[28:29]')
        e('NOH4:')
    e('s_mov_b64 vcc, -1')
    for k in range(hpipe):
        e('global_load_dwordx4 v[12:15], v31, s[32:33] sc1')
        e('global_load_dwordx4 v[16:19], v31, s[32:33] offset:128 sc1')
        e(f's_sleep {hdel}')
    e('HPOLL:')
    if mrep & 2: e('s_mov_b64 exec, vcc')
    e('global_load_dwordx4 v[12:15], v31, s[32:33] sc1')
    e('global_load_dwordx4 v[16:19], v31, s[32:33] offset:128 sc1')
    if mrep & 2: e('s_mov_b64 exec, -1')
    e(f's_waitcnt vmcnt({2*hpipe})')
    for k in range(8): e(f'v_xor_b32 v{64+k}, s{44+(k&3)}, v{12+k}')
    e('v_or3_b32 v72, v64, v65, v66'); e('v_or3_b32 v73, v67, v68, v69'); e('v_or3_b32 v72, v72, v70, v71')
    e('v_or_b32 v72, v72, v73'); e('v_and_b32 v72, 0xff, v72')
    e('v_cmp_ne_u32 vcc, 0, v72')
    for k in range(4): e(f'v_add_f32_dpp v{64+k}, v{64+k}, v{64+k} row_ror:8 row_mask:0xf bank_mask:0x3')
    e('s_cbranch_vccz HOK')
    e('s_sub_u32 s50, s50, 1')
    e('s_cbranch_scc0 HPOLL')
    P(4)
    e('HOK:')
    stamp(10)
    for k in range(4): e(f'v_add_f32_dpp v{64+k}, v{68+k}, v{68+k} row_ror:8 row_mask:0xf bank_mask:0xc')
    for k in range(2): e(f'v_add_f32_dpp v{64+k}, v{64+k}, v{64+k} row_shl:4 row_mask:0xf bank_mask:0x5')
    for k in range(2): e(f'v_add_f32_dpp v{64+k}, v{66+k}, v{66+k} row_shr:4 row_mask:0xf bank_mask:0xa')
    e('v_lshlrev_b32 v46, 16, v33')
    for k in range(2): e(f'v_add_f32_dpp v{64+k}, v{64+k}, v{64+k} quad_perm:[2,3,0,1] {D}')
    e('v_and_b32 v47, s48, v33')
    rbf(64, 64); rbf(65, 65)
    e('v_pk_add_f32 v[64:65], v[64:65], v[46:47]')
    e('v_cvt_pk_bf16_f32 v72, v64, v65')
    e(f'ds_write_b32 v29, v72 offset:{HB}')
    e('v_dot2_f32_bf16 v64, v72, v48, 0')
    for d in range(1, 4): e(f'v_mov_b32_dpp v{72+d}, v72 row_ror:{16-4*d} {D}')
    e('v_dot2_f32_bf16 v65, v72, v72, 0')
    def fmf(u, cg):
        b = BB + (u * 2 + cg) * 4; d = 80 + (u * 2 + cg) * 4
        e(f'v_mfma_f32_16x16x32_bf16 v[{d}:{d+3}], v[72:75], v[{b}:{b+3}], 0')
    fmf(0, 0)
    e('v_add_f32_dpp v64, v64, v64 row_ror:8 row_mask:0xf bank_mask:0x3')
    e('v_lshlrev_b32 v32, 16, v32')
    e('v_add_f32_dpp v64, v65, v65 row_ror:8 row_mask:0xf bank_mask:0xc')
    fmf(1, 0)
    e(f'v_add_f32_dpp v64, v64, v64 row_half_mirror {D}')
    fmf(0, 1)
    e(f'v_add_f32_dpp v64, v64, v64 quad_perm:[1,0,3,2] {D}')
    e('v_mov_b32 v65, v64')
    fmf(1, 1)
    e('v_permlane32_swap_b32 v64, v65'); e('v_add_f32 v64, v64, v65')
    e('v_mov_b32 v65, v64'); e('v_add_f32 v80, v80, v89'); e('v_permlane16_swap_b32 v64, v65'); e('v_add_f32 v64, v64, v65')
    e(f'ds_write_b32 v36, v80 offset:{RED}')
    e(f'ds_write_b32 v37, v64 offset:{ST}')
    e('v_add_f32 v84, v84, v93')
    e(f'ds_write_b32 v36, v84 offset:{RED+512}')
    e('s_waitcnt lgkmcnt(0)')
    P(4)
    e('s_barrier')
    e(f'ds_read_b128 v[56:59], v38 offset:{ST}')
    e(f'ds_read_b128 v[52:55], v27 offset:{RED}')
    e(f'ds_read_u16 v61, v34 offset:{HB}')
    e('s_waitcnt lgkmcnt(2)')
    e('v_pk_add_f32 v[56:57], v[56:57], v[58:59]'); e('v_add_f32 v56, v56, v57')
    e('s_waitcnt lgkmcnt(1)')
    e('v_pk_add_f32 v[52:53], v[52:53], v[54:55]')
    e(f'v_add_f32_dpp v56, v56, v56 quad_perm:[1,0,3,2] {D}')
    e('v_add_f32 v52, v52, v53')
    e(f'v_mul_f32_dpp v57, v56, v60 quad_perm:[0,0,0,0] {D}')
    e(f'v_mul_f32_dpp v58, v56, v60 quad_perm:[2,2,2,2] {D}')
    e('v_fma_f32 v58, -v57, v57, v58')
    e('v_max_f32 v58, 0, v58')
    rbf(58, 58)
    e(f'v_add_f32_dpp v52, v52, v52 row_half_mirror {D}')
    e(f'v_add_f32 v58, 0x{EPS:x}, v58'); rbf(58, 58)
    e('v_sqrt_f32 v58, v58')
    rbf(57, 57)
    rbf(58, 58)
    e('v_rcp_f32 v58, v58')
    e('v_fma_f32 v52, -v57, v45, v52')
    e('v_mul_f32 v52, v52, v58'); rbf(52, 52)
    e('v_add_f32 v52, v52, v32'); rbf(52, 52)
    e('v_max_f32 v52, 0, v52'); e('v_mul_f32 v52, v52, v52')
    e('v_cvt_pk_bf16_f32 v52, v52, v52')
    P(4)
    e('s_mov_b32 s40, 0x00ff00ff'); e('s_mov_b32 s41, s40')
    for t in range(4):
        a = 64 + 4 * t
        for d in range(4):
            s = t if d < 2 else 3 - t
            e(f'v_and_b32_dpp v{a+d}, v52, v{4+d} quad_perm:[{s},{s},{s},{s}] {D}')
        if t >= 1:
            c = '0' if t == 1 else 'v[80:83]'
            e(f'v_mfma_f32_16x16x32_bf16 v[80:83], v[{a-4}:{a-1}], v[{108+4*t}:{111+4*t}], {c}')
    e(f'v_mfma_f32_16x16x32_bf16 v[80:83], v[76:79], v[124:127], v[80:83]')
    e('v_permlane32_swap_b32 v80, v82'); e('v_permlane32_swap_b32 v81, v83')
    e(f'v_add_f32_dpp v80, v82, v80 row_ror:8 {D}'); e(f'v_add_f32_dpp v81, v83, v81 row_ror:8 {D}')
    e('v_bfi_b32 v80, v8, v40, v80'); e('v_bfi_b32 v81, v8, v41, v81')
    e('s_mov_b64 exec, s[40:41]')
    e('global_store_dwordx2 v39, v[80:81], s[32:33] sc1')
    e('s_mov_b64 exec, -1')
    stamp(11)
    e('s_cmp_lg_u32 s35, 0')
    e('s_cbranch_scc1 FIN')
    e('s_cmp_ge_u32 s53, 32')
    e('s_cbranch_scc1 FFIN')
    e('s_waitcnt lgkmcnt(0)')
    e('v_lshlrev_b32 v61, 16, v61'); e('v_lshlrev_b32 v35, 16, v35')
    e('s_mov_b32 s42, -1'); e('s_mov_b32 s43, 0xfff'); e('s_mov_b64 vcc, -1')
    for k in range(4): e(f'v_mov_b32 v{104+k}, s{44+k}')
    P(4)
    if fpre: e(f's_sleep {fpre}')
    if fwait: e('s_waitcnt vmcnt(0)')
    e('FPOLL:')
    if fdel: e(f's_sleep {fdel}')
    if mrep & 4: e('s_mov_b64 exec, vcc')
    e('global_load_dwordx4 v[96:99], v42, s[32:33] sc1')
    e('global_load_dwordx4 v[100:103], v43, s[32:33] sc1')
    e('s_and_b64 exec, exec, s[42:43]')
    e('global_load_dwordx4 v[104:107], v44, s[32:33] sc1')
    e('s_mov_b64 exec, -1')
    e('s_waitcnt vmcnt(0)')
    for k in range(12): e(f'v_xor_b32 v{64+k}, s{44+(k&3)}, v{96+k}')
    e('v_or3_b32 v76, v64, v65, v66'); e('v_or3_b32 v77, v67, v68, v69'); e('v_or3_b32 v76, v76, v70, v71'); e('v_or3_b32 v77, v77, v72, v73')
    e('v_or3_b32 v76, v76, v74, v75'); e('v_or_b32 v76, v76, v77'); e('v_and_b32 v76, 0xff, v76')
    e('v_cmp_ne_u32 vcc, 0, v76')
    for k in (0, 2): e(f'v_pk_add_f32 v[{64+k}:{65+k}], v[{64+k}:{65+k}], v[{68+k}:{69+k}]')
    for k in (0, 2): e(f'v_pk_add_f32 v[{64+k}:{65+k}], v[{64+k}:{65+k}], v[{72+k}:{73+k}]')
    e('s_cbranch_vccz FOK')
    e('s_sub_u32 s50, s50, 1')
    e('s_cbranch_scc0 FPOLL')
    P(4)
    e('FOK:')
    stamp(12)
    e('v_permlane32_swap_b32 v64, v66'); e('v_permlane32_swap_b32 v65, v67')
    e('v_pk_add_f32 v[64:65], v[64:65], v[66:67]')
    e('s_mov_b32 s40, 0x000f000f'); e('s_mov_b32 s41, s40')
    e('v_permlane16_swap_b32 v64, v65')
    e('v_add_f32 v64, v64, v65')
    e(f'v_add_f32_dpp v64, v64, v64 row_ror:8 {D}'); e(f'v_add_f32_dpp v64, v64, v64 row_ror:4 {D}')
    rbf(64, 64); e('v_add_f32 v64, v64, v35'); rbf(64, 64); e('v_add_f32 v64, v64, v61')
    e('v_cvt_pk_bf16_f32 v64, v64, v64')
    e('s_mov_b64 exec, s[40:41]')
    e('global_store_short v34, v64, s[28:29]')
    e('s_cmp_lg_u32 s53, 0')
    e('s_cbranch_scc1 FFIN')
    e('s_mov_b64 exec, 1')
    e('v_mov_b32 v65, 0'); e('v_mov_b32 v66, s34')
    e('global_store_dword v65, v66, s[32:33]')
    e('FFIN:')
    stamp(13)
    e('s_branch FIN')
    L2 = []
    for l in L:
        if l.startswith(';@W'):
            site = int(l[3:])
            L2.append('s_mov_b64 exec, 0')
            for k, nm in enumerate(pads[site]):
                L2.append(f's_cmp_eq_u32 s35, {k}'); L2.append(f's_cbranch_scc1 {nm}')
            L2.append(f'WB{site}:'); L2.append('s_mov_b64 exec, -1')
        else: L2.append(l)
    out, npad = pad(L2)
    ad = sizes(out)
    print('size', ad[-1], 'nops', npad, {l.strip()[:-1]: ad[i] for i, l in enumerate(out) if l.strip().endswith(':')})
    out.append('.fill 700, 4, 0xbf810000')
    return wrap('\n'.join(out), 256, 512, LDS, 128), npad

if __name__ == '__main__':
    for spec in sys.argv[1:]:
        name, _, kw = spec.partition(':')
        kw = dict((k, int(v)) for k, v in (p.split('=') for p in kw.split(',') if p))
        s, n = gen(**kw); open(name + '.s', 'w').write(s)
```

```python
import sys
from asmlib import *

H1C, H2LO, H2O, H3O, H4O, H1O = 0x1000, 0x30000, 0x40000, 0xA0000, 0x70000, 0x200000
COPYB = 0x100000
QP, QF, MX, RED, ST, HB, DUM, WB = 0, 4352, 4608, 5120, 7168, 7424, 8448, 16384
LDS = WB + 65536
TAGC = 0x9E3779B1
LOG2E = 0x3FB8AA3B
SCALE = 0x3DB504F3
EPS = 0x3727C5AC

def gen(hsl=0, now2=0, h3c=1, qa=0, qd=0, early=0, nqg=3, pre=0, lt=0, xo=0, wpf=0, wsel=1, fwait=1, stamps=0, maxtry=1 << 16, dual=24, cpf=1, warm=7, kpre=0, qpos=2, qsleep=4, ptouch=1, pdirty=1, w2pf=1, kbar=1, forcefb=0, osleep=0, hdel=0, fdel=0, nq=0, vpre=0, late=1, mrep=7, spf=3, h4pre=0, outpre=0, ncopy=8, fpre=0, hpipe=0):
    L = []
    e = L.append
    D = 'row_mask:0xf bank_mask:0xf'
    SV = 22
    def stamp(k):
        if stamps:
            e('s_memrealtime s[96:97]'); e('s_waitcnt lgkmcnt(0)'); e(f'v_writelane_b32 v{SV}, s96, {k}')
    def wave_sum(v, sdst, op='add'):
        for r in (8, 4, 2, 1): e(f'v_{op}_f32_dpp v{v}, v{v}, v{v} row_ror:{r} {D}')
        e(f'v_{op}_f32_dpp v{v}, v{v}, v{v} row_bcast:15 row_mask:0xa bank_mask:0xf')
        e(f'v_{op}_f32_dpp v{v}, v{v}, v{v} row_bcast:31 row_mask:0xc bank_mask:0xf')
        e(f'v_readlane_b32 s{sdst}, v{v}, 63')
    def rbf(d, s): e(f'v_cvt_pk_bf16_f32 v{d}, 0, v{s}')
    def reduce8(rd, st=512):
        for k in range(4): e(f'ds_read_b128 v[{48+4*k}:{51+4*k}], v{rd} offset:{QP+st*k}')
    def reduce8b(dp='row_ror:8'):
        e('s_waitcnt lgkmcnt(2)')
        e('v_pk_add_f32 v[48:49], v[48:49], v[52:53]'); e('v_pk_add_f32 v[50:51], v[50:51], v[54:55]')
        e('s_waitcnt lgkmcnt(0)')
        e('v_pk_add_f32 v[56:57], v[56:57], v[60:61]'); e('v_pk_add_f32 v[58:59], v[58:59], v[62:63]')
        e('v_pk_add_f32 v[48:49], v[48:49], v[56:57]'); e('v_pk_add_f32 v[50:51], v[50:51], v[58:59]')
        for k in range(4): e(f'v_add_f32_dpp v{48+k}, v{48+k}, v{48+k} {dp} {D}')
    KB, VB, BB = 96, 64, 96
    def ld(reg, base, first):
        if not first: e('v_add_u32 v12, 0x2000, v12')
        e(f'global_load_dwordx4 v[{reg}:{reg+3}], v12, {base} nt')
    def dma(q):
        e(f's_xor_b32 m0, s62, {q << 10}' if q else 's_mov_b32 m0, s62')
        e(f'global_load_lds_dwordx4 v{16+q}, s[20:21] nt')
    pads = {1: [], 2: [], 4: []}
    def P(site):
        if warm & site:
            nm = f'PAD{site}_{len(pads[site])}'; pads[site].append(nm)
            e(nm + ':'); e(f's_cbranch_execz WB{site}')
    def W(site):
        if warm & site: e(f';@W{site}')
    def qtry():
        e('s_load_dwordx16 s[64:79], s[98:99], 0')
        e('s_load_dwordx16 s[80:95], s[98:99], 64')
        e('s_load_dwordx16 s[8:23], s[98:99], 4096')
        e('s_load_dwordx8 s[24:31], s[98:99], 4160')
        e('s_load_dwordx8 s[56:63], s[98:99], 4192')
        e('s_add_u32 s98, s98, 256'); e('s_addc_u32 s99, s99, 0')

    e('s_cmp_ge_u32 s2, 256')
    e('s_cbranch_scc1 END')
    e('s_load_dwordx16 s[8:23], s[0:1], 0')
    e('s_load_dwordx2 s[32:33], s[0:1], 96')
    e('s_load_dwordx8 s[24:31], s[0:1], 64')
    if stamps: e('s_memrealtime s[96:97]'); e(f'v_mov_b32 v{SV}, 0')
    e('s_lshr_b32 s39, s2, 3')
    e('s_and_b32 s40, s39, 3')
    if cpf:
        e('s_getpc_b64 s[54:55]')
        e('s_lshl_b32 s41, s40, 7')
        e('s_add_u32 s54, s54, s41'); e('s_addc_u32 s55, s55, 0')
        e('v_lshlrev_b32 v10, 9, v0')
        e('v_mov_b32 v11, s55')
        e('v_add_co_u32 v10, vcc, s54, v10'); e('v_addc_co_u32 v11, vcc, 0, v11, vcc')
        e('v_cmp_gt_u32 vcc, 18, v0')
        e('s_and_saveexec_b64 s[56:57], vcc')
        e('s_cbranch_execz NOPF')
        e('global_load_dword v30, v[10:11], off')
        e('NOPF:')
        e('s_mov_b64 exec, -1')
    e('v_lshrrev_b32 v8, 6, v0')
    e('v_and_b32 v1, 63, v0')
    e('v_readfirstlane_b32 s35, v8')
    e('s_and_b32 s38, s2, 7')
    e('s_lshl_b32 s36, s38, 2')
    e('s_add_u32 s36, s36, s40')
    e('s_lshr_b32 s37, s39, 2')
    e('v_lshlrev_b32 v9, 4, v1')
    xa = 4 - xo; TA = 8 if wpf else 0
    if nqg == 2: xa = 6 - xo; assert lt
    def wdma(t, a, x, wb='s[16:17]'):
        g, hb = t & 3, t >> 2
        e(f's_add_u32 m0, s62, {t << 10}')
        if t: e(f'v_xor_b32 v{x}, 0x{g*32 | g*8192 | hb << 17:x}, v{a}')
        e(f'global_load_lds_dwordx4 v{x if t else a}, {wb} nt')
    if qa: xa = 3
    if nqg == 3: e('s_mul_i32 s41, s37, 3')
    if qa:
        e('s_add_u32 s42, s37, 1'); e('s_lshr_b32 s42, s42, 1'); e('s_min_u32 s42, s42, 2'); e('s_add_u32 s41, s41, s42')
        e('s_cmp_eq_u32 s37, 7'); e(f's_cselect_b32 s41, 26, s41')
    elif nqg == 2:
        e('s_sub_u32 s42, s37, 4'); e('s_max_i32 s42, s42, 0'); e(f's_mul_i32 s42, s42, {1+xo}'); e('s_lshl1_add_u32 s41, s37, s42')
        if xo != xa: e('s_cmp_eq_u32 s37, 7'); e(f's_cselect_b32 s41, {29-xa}, s41')
    elif xo == 2:
        e('s_sub_u32 s42, s37, 4'); e('s_max_i32 s42, s42, 0'); e('s_lshl1_add_u32 s41, s42, s41')
    else:
        if xo:
            e('s_sub_u32 s42, s37, 4'); e('s_max_i32 s42, s42, 0'); e('s_add_u32 s41, s42, s41')
        e('s_cmp_eq_u32 s37, 7'); e(f's_cselect_b32 s41, {25+xo}, s41')
    e('s_lshl_b32 s41, s41, 3'); e('s_add_u32 s41, s41, s35'); e('s_lshl_b32 s41, s41, 10')
    e('s_lshl_b32 s42, s36, 20'); e('s_add_u32 s41, s41, s42'); e('s_add_u32 s41, s41, 0xC0000')
    e('v_add_u32 v13, s41, v9')
    e('v_mov_b32 v12, v13')
    e('v_lshrrev_b32 v2, 4, v1')
    e('v_and_b32 v3, 15, v1')
    e('s_cmp_lt_u32 s37, 4')
    e('s_cbranch_scc0 F_NQ')
    e('s_lshr_b32 s40, s37, 1'); e('s_lshl_b32 s40, s40, 3'); e('s_add_u32 s40, s40, s35'); e('s_lshl_b32 s40, s40, 5')
    e('v_lshrrev_b32 v10, 3, v1'); e('v_lshl_add_u32 v10, v10, 2, s40')
    e('s_lshl_b32 s41, s36, 1'); e('s_and_b32 s42, s37, 1'); e('s_add_u32 s41, s41, s42'); e('s_lshl_b32 s41, s41, 7')
    e('v_and_b32 v11, 0x70, v9'); e('v_lshl_add_u32 v11, v10, 13, v11'); e('v_add_u32 v11, s41, v11')
    e('v_lshlrev_b32 v10, 1, v10')
    e('s_waitcnt lgkmcnt(0)')
    e('global_load_dwordx4 v[16:19], v9, s[8:9]')
    e('global_load_dwordx2 v[24:25], v10, s[8:9]')
    for t in range(4):
        if t: e('v_add_u32 v11, 0x2000, v11')
        e(f'global_load_dwordx4 v[{64+4*t}:{67+4*t}], v11, s[14:15] nt')
    e('s_load_dword s34, s[32:33], 0')
    e('s_lshl_b32 s40, s36, 2'); e('s_add_u32 s40, s40, s37'); e('s_lshl_b32 s54, s40, 11'); e(f's_add_u32 s54, s54, 0x{H1O:x}')
    e('s_lshl_b32 s55, s40, 8'); e(f's_add_u32 s55, s55, 0x{H1C:x}')
    if ptouch:
        e('v_lshlrev_b32 v10, 7, v3'); e('v_add_u32 v10, s54, v10')
        e('s_cmp_lg_u32 s35, 0'); e('s_cbranch_scc1 NOTOUCH')
        e('global_load_dword v29, v10, s[32:33]')
        e('NOTOUCH:')
    if kpre:
        e('s_barrier')
        for t in range(kpre): ld(KB + 16 + 4 * t, 's[10:11]', t == 0)
    e('s_branch F_C')
    e('F_NQ:')
    e('s_waitcnt lgkmcnt(0)')
    if late: e('s_load_dword s34, s[32:33], 0')
    if spf:
        e('s_and_b32 s40, s39, 15')
        e('s_cmp_eq_u32 s35, 0'); e('s_cbranch_scc0 SPF1')
        if spf & 8: e('s_waitcnt lgkmcnt(0)')
        if spf & 1:
            e('s_lshl_b32 s41, s38, 4'); e('s_add_u32 s41, s41, s40'); e('s_lshl_b32 s41, s41, 15'); e('s_add_u32 s41, s41, 0x180')
            e('v_lshrrev_b32 v10, 1, v1'); e('v_lshlrev_b32 v10, 10, v10'); e('v_and_b32 v11, 1, v1'); e('v_lshl_add_u32 v10, v11, 6, v10'); e('v_add_u32 v10, s41, v10')
            e('global_load_dword v29, v10, s[16:17]')
        e('SPF1:')
        if spf & 6:
            e('s_cmp_eq_u32 s35, 1'); e('s_cbranch_scc0 SPF2')
            e('s_lshl_b32 s41, s38, 22'); e(f's_mul_i32 s42, s40, {1024*nqg}'); e('s_add_u32 s41, s41, s42'); e('s_and_b32 s42, s40, 8'); e(f's_mul_i32 s42, s42, {4096 if qa else 1024*nqg}')
            e('s_add_u32 s41, s41, s42'); e(f's_add_u32 s41, s41, {0x100000 + 0xC0000 + (nqg + qa) * 8192}')
            e(f'v_min_u32 v10, {16*nqg-1}, v1'); e('v_lshl_add_u32 v10, v10, 6, s41')
            if spf & 2: e('global_load_dword v29, v10, s[10:11]')
            if spf & 4: e('global_load_dword v28, v10, s[12:13]')
            e('SPF2:')
    if late == 2: e('s_cmp_lt_u32 s37, 6'); e('s_cbranch_scc0 NLATE')
    if late: e('s_waitcnt lgkmcnt(0)')
    e('NLATE:')
    for t in range(3): ld(KB + 16 + 4 * t, 's[10:11]', t == 0)
    if not late: e('s_load_dword s34, s[32:33], 0')
    for t in range(xo): ld(KB + 4 * t, 's[10:11]', False)
    if xa > xo:
        e('s_cmp_lt_u32 s37, 6')
        e('s_cbranch_scc1 F_C')
        for t in range(xo, xa): ld(KB + 4 * t, 's[10:11]', False)
    e('F_C:')
    if stamps: e(f'v_writelane_b32 v{SV}, s96, 0')
    e('s_mov_b32 s48, 0xffff0000'); e(f's_mov_b32 s50, {maxtry}')
    e('v_and_b32 v14, 1, v1'); e('v_lshlrev_b32 v14, 4, v14'); e('v_mov_b32 v15, 0xffff'); e('v_lshlrev_b32 v14, v14, v15')
    e('v_bfe_u32 v15, v1, 1, 2')
    for d in range(4):
        e(f'v_cmp_eq_u32 vcc, {d}, v15'); e(f'v_cndmask_b32 v{4+d}, 0, v14, vcc')
    e('v_and_b32 v14, 1, v2'); e('v_lshlrev_b32 v14, 4, v14'); e('v_lshl_add_u32 v14, v3, 5, v14')
    e('v_mov_b32 v8, 0xff')
    def csetup():
        e('s_lshl_b32 s40, s35, 9'); e('s_lshr_b32 s41, s35, 2'); e('s_lshl_b32 s42, s41, 7'); e('s_add_u32 s40, s40, s42'); e('v_add_u32 v14, s40, v14')
        e('s_movk_i32 s43, 0x880'); e('s_mov_b64 s[100:101], s[12:13]')
        e('v_and_b32 v10, 3, v1'); e('v_lshl_add_u32 v10, v2, 2, v10'); e('v_lshlrev_b32 v10, 5, v10'); e('v_and_b32 v15, 4, v1'); e('v_lshl_add_u32 v10, v15, 2, v10')
        e('v_lshrrev_b32 v15, 3, v3'); e('v_mad_u32_u24 v15, v15, s43, v10')
        e('s_lshl_b32 s40, s36, 3'); e('s_add_u32 s40, s40, s37'); e('s_lshl_b32 s52, s40, 9')
        e('s_lshl_b32 s40, s36, 13'); e('s_bfe_u32 s41, s35, 0x10001'); e('s_lshl_b32 s41, s41, 11'); e('s_add_u32 s40, s40, s41'); e('s_and_b32 s41, s35, 1'); e('s_lshl_b32 s41, s41, 7')
        e('s_add_u32 s40, s40, s41'); e(f's_add_u32 s40, s40, 0x{H1O:x}'); e('s_add_u32 s98, s32, s40'); e('s_addc_u32 s99, s33, 0')
        e('v_lshlrev_b32 v20, 4, v3')
        e('s_lshl_b32 s40, s35, 2'); e(f's_add_u32 s40, s40, {MX}'); e('v_mov_b32 v21, s40')
    if early:
        e('v_mov_b32 v26, v14')
        csetup(); W(1)
    e('s_cmp_lt_u32 s37, 4')
    e('s_cbranch_scc0 F_D')
    nk0 = kpre
    e(f's_waitcnt vmcnt({5+nk0})')
    for k in range(4):
        e(f'v_lshlrev_b32 v{48+2*k}, 16, v{16+k}'); e(f'v_and_b32 v{49+2*k}, s48, v{16+k}')
    e('v_pk_add_f32 v[56:57], v[48:49], v[50:51]'); e('v_pk_add_f32 v[58:59], v[52:53], v[54:55]')
    e('v_pk_add_f32 v[56:57], v[56:57], v[58:59]'); e('v_add_f32 v56, v56, v57')
    wave_sum(56, 40)
    e('v_mov_b32 v60, 0x3b000000')
    e('v_mul_f32 v62, s40, v60')
    for k in range(0, 8, 2): e(f'v_pk_add_f32 v[{48+k}:{49+k}], v[{48+k}:{49+k}], v[62:63] op_sel_hi:[1,0] neg_lo:[0,1] neg_hi:[0,1]')
    e('v_pk_mul_f32 v[56:57], v[48:49], v[48:49]')
    for k in range(2, 8, 2): e(f'v_pk_fma_f32 v[56:57], v[{48+k}:{49+k}], v[{48+k}:{49+k}], v[56:57]')
    e('v_add_f32 v56, v56, v57')
    wave_sum(56, 40)
    rbf(57, 62)
    e('v_mul_f32 v58, s40, v60'); rbf(58, 58)
    e(f'v_add_f32 v58, 0x{EPS:x}, v58'); rbf(58, 58)
    e('v_sqrt_f32 v58, v58'); rbf(58, 58)
    e('v_rcp_f32 v58, v58')
    e(f's_waitcnt vmcnt({4+nk0})')
    e('v_lshlrev_b32 v48, 16, v24'); e('v_and_b32 v49, s48, v24'); e('v_lshlrev_b32 v50, 16, v25'); e('v_and_b32 v51, s48, v25')
    for k in range(4): e(f'v_sub_f32 v{48+k}, v{48+k}, v57')
    for k in range(4): rbf(48 + k, 48 + k)
    for k in range(4): e(f'v_mul_f32 v{48+k}, v{48+k}, v58')
    for k in range(4): e(f'v_cvt_pk_bf16_f32 v{48+k}, v{48+k}, v{48+k}')
    for t in range(4):
        for d in range(4): e(f'v_and_b32 v{32+4*t+d}, v{48+t}, v{4+d}')
    e('s_lshl_b32 s40, s35, 9'); e('s_lshr_b32 s41, s35, 1'); e('s_lshl_b32 s41, s41, 6'); e('s_add_u32 s40, s40, s41'); e(f'v_add_u32 v10, s40, v{26 if early else 14}')
    e('v_bfe_u32 v11, v1, 2, 2'); e('v_and_b32 v16, 0x30, v9'); e('v_lshl_add_u32 v16, v2, 6, v16')
    e('v_lshl_add_u32 v17, v11, 8, v16'); e('v_add_u32 v17, s54, v17'); e('v_add_u32 v18, s55, v16')
    e('v_mul_u32_u24 v11, 0x440, v11'); e('v_add_u32 v11, v11, v16')
    e('s_mov_b32 s40, 0x00ff00ff'); e('s_mov_b32 s41, 0xff00ff00')
    for t in range(4):
        e(f's_waitcnt vmcnt({3-t+nk0})')
        e(f'v_mfma_f32_16x16x32_bf16 v[48:51], v[{32+4*t}:{35+4*t}], v[{64+4*t}:{67+4*t}], ' + ('0' if t == 0 else 'v[48:51]'))
    e('s_mov_b64 exec, s[40:41]')
    e(f'ds_write_b128 v10, v[48:51] offset:{QP}')
    e('s_mov_b64 exec, -1')
    e('s_waitcnt lgkmcnt(0)')
    stamp(1)
    e('s_cmp_lg_u32 s35, 7')
    e('s_barrier')
    e('s_cbranch_scc1 L_A')
    reduce8(11, 256)
    e(f's_add_u32 s42, s34, 0x{TAGC:x}')
    e('s_and_b32 s44, s42, 0xff'); e('s_bfe_u32 s45, s42, 0x80008'); e('s_bfe_u32 s46, s42, 0x80010'); e('s_lshr_b32 s47, s42, 24')
    e('s_mov_b32 s40, 0x000f000f'); e('s_mov_b32 s41, s40')
    reduce8b()
    for k in range(4): e(f'v_add_f32_dpp v{48+k}, v{48+k}, v{48+k} row_ror:4 {D}')
    for k in range(4): e(f'v_bfi_b32 v{48+k}, v8, s{44+k}, v{48+k}')
    e('global_store_dwordx4 v17, v[48:51], s[32:33]')
    if ncopy == 8: e('global_store_dwordx4 v17, v[48:51], s[32:33] offset:1024')
    e('s_mov_b64 exec, s[40:41]')
    e('global_store_dwordx4 v18, v[48:51], s[32:33] sc1')
    e('s_mov_b64 exec, -1')
    stamp(4)
    e('L_A:')
    e('s_barrier')
    for t in range(kpre, nqg): ld(KB + 16 + 4 * t, 's[10:11]', t == 0)
    if qa:
        e('s_bitcmp1_b32 s37, 0'); e('s_cbranch_scc1 F_D'); ld(KB, 's[10:11]', False)
    e('F_D:')
    stamp(14)
    if not early: csetup()
    e('v_mov_b32 v12, v13')
    if lt: e('v_mov_b32 v23, 0')
    if not early: W(1)
    e('s_waitcnt lgkmcnt(0)')
    e(f's_add_u32 s34, s34, 0x{TAGC:x}')
    e('s_and_b32 s44, s34, 0xff'); e('s_bfe_u32 s45, s34, 0x80008'); e('s_bfe_u32 s46, s34, 0x80010'); e('s_lshr_b32 s47, s34, 24')
    if pdirty:
        e('s_cmp_lg_u32 s35, 7'); e('s_cbranch_scc1 NOPD')
        e('s_not_b32 s40, s34')
        for k in range(4): e(f'v_mov_b32 v{48+k}, s40')
        e(f's_add_u32 s42, s52, 0x{H2O:x}'); e('v_add_u32 v10, s42, v9')
        e('s_lshr_b32 s42, s52, 5'); e(f's_add_u32 s42, s42, 0x{H2LO:x}'); e('v_mov_b32 v11, s42')
        e('v_cmp_gt_u32 vcc, 32, v1'); e('v_cndmask_b32 v10, v11, v10, vcc')
        e('s_mov_b32 exec_hi, 1')
        e('global_store_dwordx4 v10, v[48:51], s[32:33]')
        e('s_mov_b64 exec, -1')
        e('NOPD:')
    e(f's_mov_b32 s49, {0 if forcefb else ncopy - 1}')
    e('s_cmp_lt_u32 s37, 4')
    if kbar == 2: e('s_cbranch_scc1 V_NQ')
    if kbar: e('s_barrier')
    def vq(a, b):
        for t in range(a, b): ld(VB + 16 + 4 * t, 's[100:101]', t == 0)
    e('s_mov_b32 s51, 0')
    if nq:
        e('s_cbranch_scc0 V_NQ')
        e('s_cmp_lt_u32 s35, 4')
        e('s_cbranch_scc0 V_NQ')
        vq(0, vpre)
        e(f's_mov_b32 s51, {nq}')
        e('s_branch FETCH2')
    e('V_NQ:')
    vq(0, nqg)
    if qa:
        e('s_and_b32 s40, s37, 5'); e('s_cbranch_scc1 V_QE'); ld(VB, 's[12:13]', False); e('V_QE:')
    e('s_cmp_lt_u32 s37, 4')
    e('s_cbranch_scc1 FETCH')
    vq(nqg, 3)
    for t in range(xo): ld(VB + 4 * t, 's[12:13]', False)
    e('s_cmp_lt_u32 s37, 6')
    e('s_cbranch_scc0 V_A')
    e('s_lshl_b32 s62, s35, 13'); e(f's_add_u32 s62, s62, {WB}')
    e('s_lshr_b32 s40, s35, 2'); e('s_and_b32 s41, s35, 3')
    e('s_lshl_b32 s42, s38, 19'); e('s_lshl_b32 s43, s40, 18'); e('s_add_u32 s42, s42, s43')
    e('s_lshl_b32 s43, s41, 15'); e('s_add_u32 s42, s42, s43'); e('s_and_b32 s43, s39, 7'); e('s_lshl_b32 s43, s43, 7'); e('s_add_u32 s42, s42, s43')
    e('v_lshrrev_b32 v16, 3, v1'); e('v_and_b32 v17, 0x70, v9'); e('v_lshl_add_u32 v16, v16, 10, v17'); e(f'v_add_u32 v{23 if lt else 16}, s42, v16')
    if not lt:
        for t in range(8): wdma(t, 16, 17)
    for t in range(pre): wdma(t, 23, 31)
    e('s_branch FETCH')
    e('V_A:')
    for t in range(xo, xa):
        ld(VB + 4 * t, 's[12:13]', False)
    if wpf:
        e('s_and_b32 s40, s39, 3'); e('s_lshl_b32 s40, s40, 3'); e('s_add_u32 s40, s40, s35'); e('s_lshl_b32 s40, s40, 12')
        e('s_and_b32 s41, s39, 4'); e('s_lshl_b32 s41, s41, 16'); e('s_add_u32 s40, s40, s41')
        e('s_lshl_b32 s41, s38, 19'); e('s_add_u32 s40, s40, s41')
        if lt:
            if wpf == 1:
                e(f's_add_u32 s40, s40, {1 << 17}'); e('v_lshl_add_u32 v23, v1, 6, s40')
            else:
                nlan = 64 // lt
                e(f'v_and_b32 v16, {nlan-1}, v1'); e('v_lshl_add_u32 v16, v16, 6, s40'); e(f'v_and_b32 v17, {nlan}, v1'); e(f'v_lshl_add_u32 v23, v17, {17 - nlan.bit_length() + 1}, v16')
        elif wpf == 1:
            if wsel: e(f's_add_u32 s40, s40, {wsel << 17}')
            e('v_lshl_add_u32 v16, v1, 6, s40')
            e('s_mov_b64 exec, 0xff')
        else:
            e('v_and_b32 v16, 7, v1'); e('v_lshl_add_u32 v16, v16, 6, s40'); e('v_and_b32 v17, 8, v1'); e('v_lshl_add_u32 v16, v17, 14, v16')
            e('s_mov_b64 exec, 0xffff')
        if pre:
            nl = (64 // lt) * (2 if wpf == 2 else 1)
            if nl < 64: e(f's_mov_b64 exec, {hex((1 << nl) - 1)}')
            for t in range(pre): e(f'global_load_dword v124, v23, s[16:17] offset:{4096//lt*t}')
            e('s_mov_b64 exec, -1')
        if not lt:
            for t in range(8): e(f'global_load_dword v124, v16, s[16:17] offset:{512*t}')
            e('s_mov_b64 exec, -1')
    e('FETCH:')
    if qd: e('s_mov_b64 s[100:101], s[16:17]')
    stamp(15)
    e('s_cmp_lt_u32 s35, 4')
    e('s_cbranch_scc0 QDONE')
    e('FETCH2:')
    qtry()
    e('s_lshl_b32 s42, s35, 6'); e('v_mov_b32 v11, s42')
    QA = list(range(64, 96, 2)); QB = list(range(8, 32, 2)) + list(range(56, 64, 2))
    e('FCHK:')
    e('s_waitcnt lgkmcnt(0)')
    for k, r in enumerate(QA + QB): e(f's_xor_b64 s[{r}:{r+1}], s[{r}:{r+1}], s[{44+2*(k&1)}:{45+2*(k&1)}]')
    e('s_or_b64 s[40:41], s[64:65], s[66:67]')
    for k, r in enumerate((QA + QB)[2:]):
        e(f's_or_b64 s[40:41], s[40:41], s[{r}:{r+1}]')
        if k < 16: e(f'v_mov_b64 v[{32+2*k}:{33+2*k}], s[{QA[k]}:{QA[k]+1}]')
        else: e(f'v_pk_add_f32 v[{2*k}:{1+2*k}], s[{QB[k-16]}:{QB[k-16]+1}], v[{2*k}:{1+2*k}]')
    e('s_or_b32 s40, s40, s41'); e('s_and_b32 s40, s40, 0xff')
    if forcefb: e('s_cmp_eq_u32 s49, 0')
    e('s_cbranch_scc0 FOKQ')
    e('s_sub_u32 s49, s49, 1')
    e('s_cbranch_scc1 QFB')
    if qsleep: e(f's_sleep {qsleep}')
    qtry()
    if nq:
        e('s_sub_u32 s51, s51, 1'); e('s_cselect_b32 s51, 0, s51'); e('s_cbranch_scc1 FCHK')
        e('s_cmp_eq_u32 s51, 0'); e('s_cbranch_scc0 FCHK')
        vq(vpre, 3)
    e('s_branch FCHK')
    P(1)
    e('FOKQ:')
    for k in (14, 15): e(f'v_pk_add_f32 v[{32+2*k}:{33+2*k}], s[{QB[k]}:{QB[k]+1}], v[{32+2*k}:{33+2*k}]')
    e('s_mov_b64 exec, 1')
    for q in range(4):
        for k in range(4 * q, 4 * q + 4): e(f'v_cvt_pk_bf16_f32 v{32+k}, v{32+2*k}, v{33+2*k}')
        e(f'ds_write_b128 v11, v[{32+4*q}:{35+4*q}] offset:{QF+16*q}')
    e('s_mov_b64 exec, -1')
    if nq:
        e('s_cmp_eq_u32 s51, 0'); e('s_cbranch_scc1 QDONE')
        vq(vpre, 3)
    e('QDONE:')
    if qd:
        e('s_cmp_lt_u32 s37, 4'); e('s_cbranch_scc1 QD_C')
        e('s_cmp_lt_u32 s37, 6'); e('s_cbranch_scc0 QD_A')
        e('s_lshl_b32 s62, s35, 13'); e(f's_add_u32 s62, s62, {WB}')
        for t in range(qd): wdma(t, 23, 31, 's[100:101]')
        e('s_branch QD_C')
        e('QD_A:')
        if wpf:
            nl = (64 // lt) * (2 if wpf == 2 else 1)
            if nl < 64: e(f's_mov_b64 exec, {hex((1 << nl) - 1)}')
            for t in range(qd): e(f'global_load_dword v124, v23, s[100:101] offset:{4096//lt*t}')
            e('s_mov_b64 exec, -1')
        e('QD_C:')
        pre = qd
    if stamps:
        e(f'v_readlane_b32 s40, v{SV}, 0'); e('s_add_u32 s41, s49, 1'); e('s_mul_i32 s41, s41, 100'); e('s_add_u32 s40, s40, s41'); e(f'v_writelane_b32 v{SV}, s40, 2')
    e(f'v_mov_b32 v63, 0x{LOG2E:x}')
    for k in (52, 53, 54, 55, 61) + ((60,) if nqg == 2 else ()): e(f'v_mov_b32 v{k}, 0xff800000')
    e('v_and_b32 v10, 0x70, v9'); e('v_lshl_add_u32 v10, v2, 7, v10')
    e(f's_add_u32 s42, s52, 0x{H2O:x}'); e('v_add_u32 v10, s42, v10'); e(f'v_add_u32 v11, 0x{COPYB:x}, v10')
    e('s_lshr_b32 s42, s52, 5'); e(f's_add_u32 s42, s42, 0x{H2LO:x}')
    e('v_mov_b32 v16, s42'); e(f'v_add_u32 v17, 0x{COPYB:x}, v16')
    e('v_and_b32 v18, 7, v1'); e('v_lshlrev_b32 v18, 2, v18'); e('v_and_b32 v19, 8, v1'); e('v_lshlrev_b32 v19, 1, v19')
    e('s_mov_b32 s40, 0x0f0f0f0f'); e('s_mov_b32 s41, s40'); e('s_mov_b32 s42, 0x00ff00ff'); e('s_mov_b32 s43, s42')
    e('s_cmp_lt_u32 s37, 4')
    e('s_waitcnt lgkmcnt(0)')
    for k in range(36, 40): e(f'v_mov_b32 v{k}, s34')
    stamp(3)
    e('s_barrier')
    e(f'ds_read_b128 v[48:51], v20 offset:{QF}')
    e('s_cbranch_scc0 QSK')
    if qa:
        e('s_waitcnt vmcnt(4)'); e('s_bitcmp1_b32 s37, 0'); e('s_cbranch_scc0 QSK')
    e(f's_waitcnt vmcnt({nqg})')
    e('QSK:')
    TO = 8
    if lt: TO = pre; TA = pre if wpf else 0
    e(f's_waitcnt vmcnt({min(2*xo+3+TO, 2*xa+3+TA)}) lgkmcnt(0)')
    e('s_load_dwordx16 s[8:23], s[0:1], 0'); e('s_load_dwordx8 s[24:31], s[0:1], 64')
    def dots(lst):
        for k in range(4):
            for r, kb in lst: e(f'v_dot2_f32_bf16 v{r}, v{kb+k}, v{48+k}, ' + ('0' if k == 0 else f'v{r}'))
    base = [(58 + t, KB + 16 + 4 * t) for t in range(3)]; ext = [(52 + t, KB + 4 * t) for t in range(4)]
    com = (xo == xa and TA == TO)
    osep = (xo or nqg < 3)
    e(f's_cmp_lt_u32 s37, {4 if osep else 6}')
    dots(base[:nqg])
    if qa:
        e('s_cbranch_scc0 SMA')
        e('s_and_b32 s63, s37, 5'); e('s_cbranch_scc1 SMX')
        dots(ext[:1])
        e('s_branch SMX')
        e('SMA:')
    else: e('s_cbranch_scc1 SMX')
    if osep and not com:
        e('s_cmp_lt_u32 s37, 6')
        e('s_cbranch_scc0 SMA')
        e(f's_waitcnt vmcnt({xo+3+TO})')
        dots(base[nqg:] + ext[:xo])
        e('s_branch SMX')
        e('SMA:')
    e(f's_waitcnt vmcnt({xa+3+TA})')
    dots(base[nqg:] + ext[:xa])
    e('SMX:')
    P(1)
    e('s_nop 1')
    for r in (58, 52):
        e(f'v_add_f32_dpp v{r}, v{r}, v{r} row_ror:8 row_mask:0xf bank_mask:0x3')
        e(f'v_add_f32_dpp v{r+1}, v{r+1}, v{r+1} row_ror:8 row_mask:0xf bank_mask:0x3')
    for r in (58, 52):
        e(f'v_add_f32_dpp v{r}, v{r+2}, v{r+2} row_ror:8 row_mask:0xf bank_mask:0xc')
        e(f'v_add_f32_dpp v{r+1}, v{r+3}, v{r+3} row_ror:8 row_mask:0xf bank_mask:0xc')
    for r in (58, 52): e(f'v_add_f32_dpp v{r}, v{r}, v{r} row_shl:4 row_mask:0xf bank_mask:0x5')
    for r in (58, 52): e(f'v_add_f32_dpp v{r}, v{r+1}, v{r+1} row_shr:4 row_mask:0xf bank_mask:0xa')
    for r in (58, 52): e(f'v_add_f32_dpp v{r}, v{r}, v{r} quad_perm:[1,0,3,2] {D}')
    for r in (58, 52): e(f'v_add_f32_dpp v{r}, v{r}, v{r} quad_perm:[2,3,0,1] {D}')
    rbf(58, 58); rbf(52, 52); e(f'v_mul_f32 v58, 0x{SCALE:x}, v58'); e(f'v_mul_f32 v52, 0x{SCALE:x}, v52'); rbf(58, 58); rbf(52, 52)
    e('v_max_f32 v54, v52, v58')
    e(f'v_max_f32_dpp v54, v54, v54 row_ror:8 {D}'); e(f'v_max_f32_dpp v54, v54, v54 row_ror:4 {D}')
    e('v_mov_b32 v53, v54'); e('v_permlane32_swap_b32 v53, v54'); e('v_max_f32 v54, v53, v54')
    e('v_mov_b32 v53, v54'); e('v_permlane16_swap_b32 v53, v54'); e('v_max_f32 v54, v53, v54')
    e('v_sub_f32 v58, v58, v54'); e('v_sub_f32 v52, v52, v54'); e('v_mul_f32 v58, v58, v63'); e('v_mul_f32 v52, v52, v63')
    e('v_exp_f32 v58, v58'); e('v_exp_f32 v52, v52')
    e('v_cvt_pk_bf16_f32 v57, v58, v58'); e('v_cvt_pk_bf16_f32 v56, v52, v52')
    e('v_add_f32 v55, v58, v52')
    def amask(t):
        s, b = (56, 4 * t) if t < 4 else (57, 4 * (t - 4))
        for d in range(4): e(f'v_and_b32_dpp v{KB+4*t+d}, v{s}, v{4+d} row_newbcast:{b} {D}')
    def pv(t): e(f'v_mfma_f32_16x16x32_bf16 v[44:47], v[{KB+4*t}:{KB+3+4*t}], v[{VB+4*t}:{VB+3+4*t}], ' + ('0' if t == 4 else 'v[44:47]'))
    amask(4)
    e(f'v_add_f32_dpp v55, v55, v55 row_ror:8 {D}')
    amask(5)
    e(f'v_add_f32_dpp v55, v55, v55 row_ror:4 {D}')
    e('v_mov_b32 v53, v55')
    amask(6)
    e('v_permlane32_swap_b32 v53, v55'); e('v_add_f32 v55, v53, v55'); e('v_mov_b32 v53, v55')
    e('v_permlane16_swap_b32 v53, v55'); e('v_add_f32 v55, v53, v55')
    e('s_mov_b64 exec, 1'); e('ds_write2_b32 v21, v54, v55 offset0:0 offset1:8'); e('s_mov_b64 exec, -1')
    stamp(5)
    if lt: TO = lt; TA = lt if wpf else 0
    com = com and TA == TO
    def otrail():
        e('s_lshl_b32 s62, s35, 13'); e(f's_add_u32 s62, s62, {WB}')
        for t in range(pre, lt): wdma(t, 23, 31)
    def atrail():
        nl = (64 // lt) * (2 if wpf == 2 else 1)
        e(f's_mov_b64 exec, {hex((1 << nl) - 1)}' if nl < 64 else 's_nop 0')
        for t in range(pre, lt): e(f'global_load_dword v124, v23, s[16:17] offset:{4096//lt*t}')
        e('s_mov_b64 exec, -1')
    def pvs(x, T):
        for k, t in enumerate((4, 5, 6, 0, 1, 2, 3)[:3+x]):
            if k < x: amask(k)
            e(f's_waitcnt vmcnt({T+2+x-k})'); pv(t)
        e('s_nop 5')
        e('s_branch PVD')
    e(f's_cmp_lt_u32 s37, {4 if com else 6}')
    if lt > pre: e('s_waitcnt lgkmcnt(0)')
    e('s_cbranch_scc1 NOTA')
    if lt == pre: pass
    elif lt and com:
        e('s_cmp_lt_u32 s37, 6')
        e('s_cbranch_scc0 LT_A')
        otrail()
        e('s_branch LT_C')
        e('LT_A:')
        atrail()
        e('LT_C:')
    elif lt and wpf: atrail()
    pvs(xa, TA)
    P(1)
    e('NOTA:')
    if not com:
        e('s_cmp_lt_u32 s37, 4')
        e('s_cbranch_scc1 LQ2')
        if lt > pre: otrail()
        pvs(xo, TO)
    e('LQ2:')
    if qa:
        e('s_bitcmp1_b32 s37, 0'); e('s_cbranch_scc1 LQ3')
        pvs(1, 0)
        e('LQ3:')
    if w2pf == 4:
        e('s_min_u32 s56, s38, 3'); e('s_mul_i32 s57, s38, 5'); e('s_add_u32 s56, s56, s57')
        e('s_cmp_lt_u32 s35, 4'); e('s_waitcnt lgkmcnt(0)'); e('s_cbranch_scc1 EPW1')
        e('s_min_u32 s58, s35, 6')
        e('s_lshl_b32 s56, s56, 15'); e('s_mul_i32 s57, s39, 3'); e('s_add_u32 s57, s57, s58'); e('s_sub_u32 s57, s57, 4'); e('s_lshl_b32 s57, s57, 12'); e('s_add_u32 s56, s56, s57')
        e(f's_min_u32 s56, s56, {1376*1024-4096}')
        e('v_lshl_add_u32 v24, v1, 6, s56')
        e('s_cmp_eq_u32 s35, 7'); e('s_cselect_b64 exec, 1, -1')
        e('global_load_dword v124, v24, s[24:25]')
        e('s_mov_b64 exec, -1')
        e('s_branch EPD')
        e('EPW1:')
        e('s_lshl_b32 s57, s39, 2'); e('s_add_u32 s57, s57, s35'); e('s_mul_i32 s57, s57, 8*2752'); e('s_lshl_b32 s56, s56, 6'); e('s_add_u32 s56, s56, s57')
        e('v_lshrrev_b32 v24, 3, v1'); e('v_mul_u32_u24 v24, 2752, v24'); e('v_and_b32 v25, 7, v1'); e('v_min_u32 v25, 5, v25'); e('v_lshl_add_u32 v24, v25, 6, v24')
        e('v_add_u32 v24, s56, v24'); e(f'v_min_u32 v24, {512*2752-4}, v24')
        e('global_load_dword v124, v24, s[20:21]')
        e('EPD:')
    for t in range(nqg):
        e(f's_waitcnt vmcnt({nqg-1-t+(w2pf == 4)})'); pv(4 + t)
    e('PVD:')
    e('s_mov_b64 exec, 0xffffffff')
    e(f'ds_write_b128 v14, v[44:47] offset:{QP}')
    e('s_mov_b64 exec, -1')
    e('s_cmp_lg_u32 s35, 7')
    e('s_waitcnt lgkmcnt(0)')
    stamp(7)
    e('s_barrier')
    e('s_cbranch_scc1 L_LSE')
    e(f'ds_read_b128 v[40:43], v19 offset:{MX}')
    e('v_mov_b32 v34, v63')
    reduce8(15)
    e('s_waitcnt lgkmcnt(4)')
    e('v_max3_f32 v32, v40, v41, v42'); e('v_max_f32 v32, v32, v43')
    e(f'v_max_f32_dpp v32, v32, v32 row_ror:8 {D}')
    for k in (40, 42): e(f'v_pk_add_f32 v[{k}:{k+1}], v[{k}:{k+1}], v[32:33] op_sel_hi:[1,0] neg_lo:[0,1] neg_hi:[0,1]')
    for k in (40, 42): e(f'v_pk_mul_f32 v[{k}:{k+1}], v[{k}:{k+1}], v[34:35] op_sel_hi:[1,0]')
    for k in range(40, 44): e(f'v_exp_f32 v{k}, v{k}')
    e('s_waitcnt lgkmcnt(0)')
    for h in (0, 2): e(f'v_pk_mul_f32 v[{48+h}:{49+h}], v[{48+h}:{49+h}], v[40:41] op_sel_hi:[1,0]')
    for h in (0, 2): e(f'v_pk_mul_f32 v[{56+h}:{57+h}], v[{56+h}:{57+h}], v[42:43] op_sel_hi:[1,0]')
    for h in (0, 2): e(f'v_pk_fma_f32 v[{48+h}:{49+h}], v[{52+h}:{53+h}], v[40:41], v[{48+h}:{49+h}] op_sel:[0,1,0]')
    for h in (0, 2): e(f'v_pk_fma_f32 v[{56+h}:{57+h}], v[{60+h}:{61+h}], v[42:43], v[{56+h}:{57+h}] op_sel:[0,1,0]')
    for h in (0, 2): e(f'v_pk_add_f32 v[{48+h}:{49+h}], v[{48+h}:{49+h}], v[{56+h}:{57+h}]')
    for k in range(4): e(f'v_add_f32_dpp v{48+k}, v{48+k}, v{48+k} row_ror:8 {D}')
    e('s_mov_b64 exec, s[40:41]')
    e('v_cvt_pk_bf16_f32 v38, v48, v49'); e('v_cvt_pk_bf16_f32 v39, v50, v51')
    e('s_not_b64 exec, exec')
    e('v_cvt_pk_bf16_f32 v36, v48, v49'); e('v_cvt_pk_bf16_f32 v37, v50, v51')
    e('s_mov_b64 exec, s[42:43]')
    e('global_store_dwordx4 v10, v[36:39], s[32:33]')
    e('global_store_dwordx4 v11, v[36:39], s[32:33] sc1')
    e('s_mov_b64 exec, -1')
    stamp(8)
    e('s_branch L_B5')
    P(1)
    e('L_LSE:')
    e('s_cmp_lg_u32 s35, 0')
    e('s_cbranch_scc1 L_B5')
    e(f'ds_read_b32 v48, v18 offset:{MX}'); e(f'ds_read_b32 v49, v18 offset:{MX+32}')
    e('s_waitcnt lgkmcnt(1)')
    e(f'v_max_f32_dpp v36, v48, v48 quad_perm:[1,0,3,2] {D}')
    e(f'v_max_f32_dpp v36, v36, v36 quad_perm:[2,3,0,1] {D}')
    e(f'v_max_f32_dpp v36, v36, v36 row_half_mirror {D}')
    e('v_sub_f32 v48, v48, v36'); e('v_mul_f32 v48, v48, v63'); e('v_exp_f32 v48, v48')
    e('s_waitcnt lgkmcnt(0)')
    e('v_mul_f32 v37, v48, v49')
    e(f'v_add_f32_dpp v37, v37, v37 quad_perm:[1,0,3,2] {D}')
    e(f'v_add_f32_dpp v37, v37, v37 quad_perm:[2,3,0,1] {D}')
    e(f'v_add_f32_dpp v37, v37, v37 row_half_mirror {D}')
    e('s_mov_b64 exec, 1')
    e('global_store_dwordx4 v16, v[36:39], s[32:33]')
    e('global_store_dwordx4 v17, v[36:39], s[32:33] sc1')
    e('s_mov_b64 exec, -1')
    stamp(6)
    e('L_B5:')
    e('s_lshr_b32 s40, s37, 1')
    e('s_cmp_eq_u32 s40, 2')
    e('s_barrier')
    e('s_cbranch_scc0 NOTOP')

    e('s_lshr_b32 s40, s35, 2'); e('s_and_b32 s41, s35, 3')
    e('s_lshl_b32 s62, s35, 13'); e(f's_add_u32 s62, s62, {WB}')
    if lt:
        for t in range(lt, 8): wdma(t, 23, 31)
    e('v_and_b32 v26, 1, v2'); e('v_lshlrev_b32 v24, 2, v26'); e('v_and_b32 v25, 7, v3'); e('v_xor_b32 v24, v24, v25')
    e('v_lshrrev_b32 v27, 1, v2'); e('v_lshl_add_u32 v24, v27, 3, v24'); e('v_lshlrev_b32 v24, 4, v24')
    e('s_lshl_b32 s42, s38, 1'); e('s_add_u32 s42, s42, s40')
    e('s_lshl_b32 s43, s42, 8'); e(f's_add_u32 s43, s43, 0x{H2LO:x}'); e('v_add_u32 v24, s43, v24')
    e('s_lshl_b32 s43, s42, 13'); e('s_lshl_b32 s42, s41, 7'); e('s_add_u32 s43, s43, s42'); e(f's_add_u32 s43, s43, 0x{H2O:x}')
    e('v_lshlrev_b32 v25, 9, v3'); e('v_lshl_add_u32 v25, v2, 4, v25'); e('v_add_u32 v25, s43, v25')
    e('v_lshl_add_u32 v27, v26, 1, v27'); e('v_lshl_add_u32 v27, v27, 4, v3'); e('v_lshlrev_b32 v27, 2, v27')
    e('s_lshl_b32 s42, s38, 11'); e('s_and_b32 s43, s39, 7'); e('s_lshl_b32 s43, s43, 8'); e('s_add_u32 s42, s42, s43'); e(f's_add_u32 s42, s42, 0x{H3O:x}')
    if h3c > 1: e('s_lshl_b32 s43, s35, 14'); e('s_add_u32 s42, s42, s43')
    e('v_add_u32 v27, s42, v27')
    e('v_and_b32 v16, 3, v3'); e('v_lshlrev_b32 v16, 3, v16'); e('v_lshrrev_b32 v28, v16, s34')
    e('v_lshrrev_b32 v17, 2, v3'); e('v_lshl_add_u32 v16, v17, 7, v16'); e('v_mul_u32_u24 v17, 1056, v2'); e('v_add3_u32 v16, v16, v17, s62')
    for cg in range(1, 4): e(f'v_xor_b32 v{16+cg}, {32*cg}, v16')
    e('v_lshlrev_b32 v29, 2, v1'); e('s_lshl_b32 s42, s35, 8'); e('v_add_u32 v26, s42, v29')
    for r in range(8): e(f'v_mov_b32 v{56+r}, 0')
    e(f's_mov_b32 s49, {dual}')
    W(2)
    def opoll():
        e('global_load_dwordx4 v[48:51], v24, s[32:33] sc1')
        e('global_load_dwordx4 v[64:67], v25, s[32:33] sc1')
        e('global_load_dwordx4 v[68:71], v25, s[32:33] offset:64 sc1')
    opoll()
    e('s_waitcnt vmcnt(3)')
    for hb in range(2):
        for cg in range(4):
            b = BB + (hb * 4 + cg) * 4
            for a in range(2):
                e(f'ds_read_b64_tr_b16 v[{b+2*a}:{b+2*a+1}], v{16+cg} offset:{hb*4096+a*512}')
    stamp(9)
    e('s_branch OCHK')
    e('OPOLL:')
    e('s_sub_u32 s49, s49, 1')
    e('s_cmp_lg_u32 s49, 0')
    e('s_cbranch_scc1 OP2')
    e(f'v_add_u32 v24, 0x{COPYB:x}, v24'); e(f'v_add_u32 v25, 0x{COPYB:x}, v25')
    e('OP2:')
    if osleep: e(f's_sleep {osleep}')
    if mrep & 1:
        e('s_mov_b64 exec, vcc'); e('global_load_dwordx4 v[48:51], v24, s[32:33] sc1')
        e('s_mov_b64 exec, s[40:41]'); e('global_load_dwordx4 v[64:67], v25, s[32:33] sc1')
        e('global_load_dwordx4 v[68:71], v25, s[32:33] offset:64 sc1')
        e('s_mov_b64 exec, -1')
    else: opoll()
    e('OCHK:')
    e('s_waitcnt vmcnt(0)')
    e('v_cmp_ne_u32 s[40:41], s34, v64'); e('v_cmp_ne_u32 s[42:43], s34, v71'); e('v_cmp_ne_u32 vcc, s34, v51')
    for k in range(4): e(f'v_mov_b32_dpp v{56+k}, v{66+k} quad_perm:[0,1,2,3] row_mask:0xf bank_mask:0x3')
    e('s_or_b64 s[40:41], s[40:41], s[42:43]'); e('s_or_b64 s[42:43], vcc, s[40:41]')
    e('s_cbranch_scc0 OOK')
    e('s_sub_u32 s50, s50, 1')
    e('s_cbranch_scc0 OPOLL')
    P(2)
    e('OOK:')
    stamp(10)
    def omf(hb, cg):
        b = BB + (hb * 4 + cg) * 4; d = 80 + cg * 4
        e(f'v_mfma_f32_16x16x32_bf16 v[{d}:{d+3}], v[{56+4*hb}:{59+4*hb}], v[{b}:{b+3}], ' + (f'v[{d}:{d+3}]' if hb else '0'))
    e('s_waitcnt lgkmcnt(0)')
    omf(0, 0)
    e(f'v_max_f32_dpp v52, v48, v48 quad_perm:[1,0,3,2] {D}')
    for k in range(2): e(f'v_mov_b32_dpp v{60+k}, v{66+k} quad_perm:[0,1,2,3] row_mask:0xf bank_mask:0xc')
    omf(0, 1)
    e(f'v_max_f32_dpp v52, v52, v52 quad_perm:[2,3,0,1] {D}')
    for k in range(2, 4): e(f'v_mov_b32_dpp v{60+k}, v{66+k} quad_perm:[0,1,2,3] row_mask:0xf bank_mask:0xc')
    omf(0, 2)
    e(f'v_max_f32_dpp v52, v52, v52 row_half_mirror {D}')
    e('v_sub_f32 v52, v48, v52')
    omf(0, 3)
    e(f'v_mul_f32 v52, 0x{LOG2E:x}, v52'); e('v_exp_f32 v52, v52')
    omf(1, 0)
    e('v_mul_f32 v53, v52, v49')
    omf(1, 1)
    e(f'v_mov_b32_dpp v72, v52 row_newbcast:0 {D}')
    e(f'v_add_f32_dpp v53, v53, v53 quad_perm:[1,0,3,2] {D}')
    omf(1, 2)
    e(f'v_mov_b32_dpp v73, v52 row_newbcast:1 {D}')
    e(f'v_add_f32_dpp v53, v53, v53 quad_perm:[2,3,0,1] {D}')
    omf(1, 3)
    e(f'v_mov_b32_dpp v74, v52 row_newbcast:2 {D}')
    e(f'v_add_f32_dpp v53, v53, v53 row_half_mirror {D}')
    e(f'v_mov_b32_dpp v75, v52 row_newbcast:3 {D}')
    e('v_rcp_f32 v53, v53')
    for cg in range(4):
        e(f'v_pk_mul_f32 v[{32+2*cg}:{33+2*cg}], v[{80+4*cg}:{81+4*cg}], v[72:73]')
        e(f'v_pk_fma_f32 v[{32+2*cg}:{33+2*cg}], v[{82+4*cg}:{83+4*cg}], v[74:75], v[{32+2*cg}:{33+2*cg}]')
        e(f'v_add_f32 v{40+cg}, v{32+2*cg}, v{33+2*cg}')
        if cg & 1: e(f'v_pk_mul_f32 v[{39+cg}:{40+cg}], v[{39+cg}:{40+cg}], v[52:53] op_sel:[0,1]')
        if cg == 2: e('v_permlane32_swap_b32 v40, v41'); e('v_add_f32 v40, v40, v41')
    e(f's_cmp_ge_u32 s35, {h3c}')
    e('v_permlane32_swap_b32 v42, v43')
    e('v_add_f32 v42, v42, v43')
    e('v_permlane16_swap_b32 v40, v42')
    e('v_add_f32 v40, v40, v42')
    e(f'ds_write_b32 v26, v40 offset:{RED}')
    e('s_waitcnt lgkmcnt(0)')
    stamp(11)
    e('s_barrier')
    e('s_cbranch_scc1 FIN')
    for k in range(4): e(f'ds_read2st64_b32 v[{48+2*k}:{49+2*k}], v29 offset0:{RED//256+2*k} offset1:{RED//256+2*k+1}')
    e('s_waitcnt lgkmcnt(2)')
    e('v_pk_add_f32 v[48:49], v[48:49], v[50:51]')
    e('s_waitcnt lgkmcnt(0)')
    e('v_pk_add_f32 v[52:53], v[52:53], v[54:55]')
    e('v_pk_add_f32 v[48:49], v[48:49], v[52:53]'); e('v_add_f32 v48, v48, v49')
    e('v_bfi_b32 v48, v8, v28, v48')
    e('global_store_dword v27, v48, s[32:33] sc1')
    stamp(12)
    e('FIN:')
    if stamps:
        e('s_cmp_eq_u32 s35, 0'); e('s_cselect_b32 s41, 0, 128'); e('s_cbranch_scc1 FL'); e('s_cmp_eq_u32 s35, 7'); e('s_cbranch_scc0 END')
        e('FL:'); e('s_mov_b64 exec, 0xffff')
        e('s_lshl_b32 s40, s2, 8'); e('s_add_u32 s40, s40, s41'); e('s_add_u32 s40, s40, 0x8000000'); e('v_lshlrev_b32 v24, 3, v1'); e('v_add_u32 v24, s40, v24')
        e(f'v_mov_b32 v{SV+1}, 0'); e(f'global_store_dwordx2 v24, v[{SV}:{SV+1}], s[32:33]')
    e('END:')
    e('s_endpgm')
    P(2)

    e('QFB:')
    e('s_lshl_b32 s40, s36, 10'); e('s_lshl_b32 s41, s35, 7'); e('s_add_u32 s40, s40, s41'); e(f's_add_u32 s40, s40, 0x{H1C:x}')
    e('v_and_b32 v51, 31, v1'); e('v_lshl_add_u32 v10, v51, 2, s40')
    e('v_and_b32 v50, 3, v3'); e('v_lshlrev_b32 v50, 3, v50'); e('v_lshrrev_b32 v50, v50, s34'); e('v_and_b32 v50, 0xff, v50')
    e('v_lshl_add_u32 v11, v51, 1, v11')
    e('QFB1:')
    e('global_load_dword v48, v10, s[32:33] sc1')
    e('global_load_dword v49, v10, s[32:33] offset:512 sc1')
    e('s_waitcnt vmcnt(0)')
    e('v_xor_b32 v48, v48, v50'); e('v_xor_b32 v49, v49, v50'); e('v_or_b32 v51, v48, v49'); e('v_and_b32 v51, 0xff, v51')
    e('v_cmp_ne_u32 vcc, 0, v51')
    e('s_nop 4')
    e('s_cbranch_vccz QFB2')
    e('s_sub_u32 s50, s50, 1')
    e('s_cbranch_scc0 QFB1')
    e('QFB2:')
    e('v_add_f32 v48, v48, v49'); e('v_cvt_pk_bf16_f32 v48, v48, v48')
    e(f'ds_write_b16 v11, v48 offset:{QF}')
    e('s_branch QDONE')

    P(1)
    e('NOTOP:')
    e('s_min_u32 s40, s38, 3'); e('s_mul_i32 s41, s38, 5'); e('s_add_u32 s40, s40, s41')
    e('s_cmp_lt_u32 s37, 4')
    e('s_cbranch_scc0 NOTQ')
    if w2pf == 4: e('s_waitcnt vmcnt(0)')
    elif w2pf:
        e('s_cmp_lt_u32 s35, 4'); e('s_cbranch_scc1 PFW1')
        e('s_cmp_eq_u32 s35, 7'); e('s_cbranch_scc1 FIN')
        if w2pf == 2: e('s_branch FIN')
        if w2pf == 3: e('s_barrier')
        e('s_lshl_b32 s40, s40, 15'); e('s_mul_i32 s41, s39, 3'); e('s_add_u32 s41, s41, s35'); e('s_sub_u32 s41, s41, 4'); e('s_lshl_b32 s41, s41, 12'); e('s_add_u32 s40, s40, s41')
        e(f's_min_u32 s40, s40, {1376*1024-4096}')
        e('v_lshl_add_u32 v16, v1, 6, s40')
        e('global_load_dword v48, v16, s[24:25]')
        e('s_waitcnt vmcnt(0)')
        e('s_branch FIN')
        e('PFW1:')
        e('s_lshl_b32 s41, s39, 2'); e('s_add_u32 s41, s41, s35'); e('s_mul_i32 s41, s41, 8*2752'); e('s_lshl_b32 s40, s40, 6'); e('s_add_u32 s40, s40, s41')
        e('v_lshrrev_b32 v16, 3, v1'); e('v_mul_u32_u24 v16, 2752, v16'); e('v_and_b32 v17, 7, v1'); e('v_min_u32 v17, 5, v17'); e('v_lshl_add_u32 v16, v17, 6, v16')
        e('v_add_u32 v16, s40, v16'); e(f'v_min_u32 v16, {512*2752-4}, v16')
        e('global_load_dword v48, v16, s[20:21]')
        e('s_waitcnt vmcnt(0)')
        if w2pf == 3: e('s_barrier')
    e('s_branch FIN')
    e('NOTQ:')
    e('s_cmp_lt_u32 s2, 235')
    e('s_cbranch_scc0 FIN')
    e('s_sub_u32 s41, s39, 24'); e('s_add_u32 s53, s40, s41')
    e('s_lshl_b32 s62, s35, 12'); e(f's_add_u32 s62, s62, {WB}')
    e('v_and_b32 v24, 3, v3'); e('v_lshrrev_b32 v16, 2, v1'); e('v_lshlrev_b32 v17, 4, v24')
    e('v_lshrrev_b32 v23, 2, v3'); e('v_lshlrev_b32 v23, 6, v23'); e('v_lshl_add_u32 v23, v2, 9, v23')
    e('v_lshl_add_u32 v23, v24, 3, v23'); e('v_add_u32 v23, s62, v23')
    e('s_and_b32 s54, s53, 1')
    e('s_mul_i32 s40, s35, 64*2752'); e('s_lshl_b32 s41, s53, 6'); e('s_add_u32 s40, s40, s41')
    e('s_movk_i32 s42, 2752')
    e('v_mad_u32_u24 v16, v16, s42, v17')
    e('s_mul_i32 s41, s54, 32*2752'); e('s_add_u32 s42, s40, s41'); e('s_sub_u32 s40, s40, s41'); e(f's_add_u32 s40, s40, {32*2752}')
    e('v_add_u32 v18, s40, v16'); e('v_add_u32 v16, s42, v16')
    e(f'v_add_u32 v17, {16*2752}, v16'); e(f'v_add_u32 v19, {16*2752}, v18')
    e('s_lshl_b32 s43, s54, 11'); e('s_add_u32 s62, s62, s43')
    for q in range(4): dma(q)
    e('v_lshrrev_b32 v24, 3, v1')
    e('v_and_b32 v25, 7, v1')
    e('v_lshlrev_b32 v26, 12, v24'); e('v_lshl_add_u32 v26, v25, 4, v26')
    e('s_lshl_b32 s40, s53, 15'); e('s_lshl_b32 s41, s35, 7'); e('s_add_u32 s40, s40, s41'); e('v_add_u32 v26, s40, v26')
    if now2: e('s_mov_b64 exec, 1')
    for t in range(4): e(f'global_load_dwordx4 v[{112+4*t}:{115+4*t}], v26, s[24:25] offset:{1024*t} nt')
    if now2: e('s_mov_b64 exec, -1')
    e('v_sub_u32 v27, 7, v25'); e('v_min_u32 v27, v27, v25'); e('v_lshl_add_u32 v27, v24, 2, v27')
    e('s_lshl_b32 s41, s53, 6'); e('v_lshl_add_u32 v28, v27, 1, s41')
    e('v_lshrrev_b32 v29, 2, v25'); e('v_lshlrev_b32 v29, 4, v29'); e('v_lshl_add_u32 v27, v27, 5, v29')
    e('v_lshrrev_b32 v29, 3, v3'); e('v_lshlrev_b32 v29, 6, v29'); e('v_lshl_add_u32 v29, v2, 4, v29')
    e('v_and_b32 v30, 1, v3'); e('v_lshl_add_u32 v29, v30, 3, v29'); e('v_and_b32 v31, 4, v3'); e('v_add_u32 v29, v29, v31')
    e('s_lshl_b32 s41, s35, 7'); e('v_add_u32 v29, s41, v29')
    e('v_lshrrev_b32 v31, 1, v3'); e('v_lshlrev_b32 v31, 11, v31'); e('v_lshl_add_u32 v31, v2, 5, v31'); e('v_lshl_add_u32 v31, v30, 4, v31')
    e('s_lshl_b32 s41, s35, 8'); e(f's_add_u32 s41, s41, 0x{H3O:x}')
    if h3c > 1: e(f's_and_b32 s42, s38, {h3c-1}'); e('s_lshl_b32 s42, s42, 14'); e('s_add_u32 s41, s41, s42')
    e('v_add_u32 v31, s41, v31')
    e('global_load_ushort v32, v28, s[22:23]')
    e('global_load_dword v33, v29, s[8:9]')
    e('v_and_b32 v34, 3, v1'); e('v_lshl_add_u32 v34, v34, 2, v2'); e('s_and_b32 s41, s53, 31'); e('s_lshl_b32 s41, s41, 5'); e('v_lshl_add_u32 v34, v34, 1, s41')
    e('global_load_ushort v35, v34, s[26:27]')
    e('s_lshl_b32 s41, s35, 2'); e('v_lshl_add_u32 v36, v3, 5, s41')
    e(f'v_mov_b32 v37, {DUM-RED}'); e('v_cmp_gt_u32 vcc, 16, v1'); e('v_cndmask_b32 v36, v37, v36, vcc')
    e('v_lshrrev_b32 v37, 3, v3'); e('v_lshl_add_u32 v37, v37, 5, s41')
    e('v_and_b32 v38, 3, v1'); e('v_lshlrev_b32 v38, 4, v38')
    e('v_and_b32 v39, 1, v2'); e('v_lshlrev_b32 v39, 4, v39'); e('v_lshl_add_u32 v39, v25, 5, v39')
    e('v_lshrrev_b32 v40, 1, v2'); e('v_lshl_add_u32 v39, v40, 3, v39')
    e('s_lshl_b32 s40, s53, 11'); e('s_lshl_b32 s41, s35, 8'); e('s_add_u32 s40, s40, s41'); e(f's_add_u32 s40, s40, 0x{H4O:x}'); e('v_add_u32 v39, s40, v39')
    e('v_lshlrev_b32 v40, 4, v40'); e('v_lshrrev_b32 v40, v40, s34'); e('v_lshrrev_b32 v41, 8, v40')
    e('v_lshrrev_b32 v42, 2, v1'); e('v_lshlrev_b32 v42, 11, v42'); e('v_add_u32 v42, v42, v38')
    e('s_lshl_b32 s40, s53, 6'); e(f's_add_u32 s40, s40, 0x{H4O:x}'); e('v_add_u32 v42, s40, v42')
    e('v_add_u32 v43, 0x8000, v42'); e('v_add_u32 v44, 0x10000, v42')
    for d in range(4): e(f'v_mov_b32 v{48+d}, 0x3f803f80')
    W(4)
    e('s_waitcnt vmcnt(7)')
    for u in range(2):
        for cg in range(2):
            b = BB + (u * 2 + cg) * 4
            for a in range(2):
                e(f'ds_read_b64_tr_b16 v[{b+2*a}:{b+2*a+1}], v23 offset:{a*2048+u*256+cg*32}')
    e('s_waitcnt lgkmcnt(0)')
    e(f'v_mfma_f32_16x16x32_bf16 v[80:83], v[48:51], v[{BB}:{BB+3}], 0')
    e(f'v_mfma_f32_16x16x32_bf16 v[84:87], v[48:51], v[{BB+4}:{BB+7}], 0')
    e(f'v_mfma_f32_16x16x32_bf16 v[80:83], v[48:51], v[{BB+8}:{BB+11}], v[80:83]')
    e(f'v_mfma_f32_16x16x32_bf16 v[84:87], v[48:51], v[{BB+12}:{BB+15}], v[84:87]')
    e(f'ds_write_b32 v36, v80 offset:{QP}'); e(f'ds_write_b32 v36, v84 offset:{QP+512}')
    e('s_waitcnt lgkmcnt(0)')
    e('s_barrier')
    e(f'ds_read_b128 v[52:55], v27 offset:{QP}')
    e('s_waitcnt lgkmcnt(0)')
    e('v_add_f32 v52, v52, v53'); e('v_add_f32 v54, v54, v55'); e('v_add_f32 v45, v52, v54')
    e(f'v_add_f32_dpp v45, v45, v45 row_half_mirror {D}')
    e('v_mov_b32 v60, 0x3b000000')
    stamp(9)
    if h4pre or outpre:
        e('s_cmp_lg_u32 s35, 0'); e('s_cbranch_scc1 NOH4')
        if h4pre:
            e('global_load_dword v88, v42, s[32:33] sc1'); e('global_load_dword v89, v43, s[32:33] sc1'); e('global_load_dword v90, v44, s[32:33] sc1')
        if outpre: e('global_load_ushort v91, v34, s[28:29]')
        e('NOH4:')
    e('s_mov_b64 vcc, -1')
    for k in range(hpipe):
        e('global_load_dwordx4 v[12:15], v31, s[32:33] sc1')
        e('global_load_dwordx4 v[16:19], v31, s[32:33] offset:128 sc1')
        e(f's_sleep {hdel}')
    e('HPOLL:')
    if hsl: e(f's_sleep {hsl}')
    if mrep & 2: e('s_mov_b64 exec, vcc')
    e('global_load_dwordx4 v[12:15], v31, s[32:33] sc1')
    e('global_load_dwordx4 v[16:19], v31, s[32:33] offset:128 sc1')
    if mrep & 2: e('s_mov_b64 exec, -1')
    e(f's_waitcnt vmcnt({2*hpipe})')
    for k in range(8): e(f'v_xor_b32 v{64+k}, s{44+(k&3)}, v{12+k}')
    e('v_or3_b32 v72, v64, v65, v66'); e('v_or3_b32 v73, v67, v68, v69'); e('v_or3_b32 v72, v72, v70, v71')
    e('v_or_b32 v72, v72, v73'); e('v_and_b32 v72, 0xff, v72')
    e('v_cmp_ne_u32 vcc, 0, v72')
    for k in range(4): e(f'v_add_f32_dpp v{64+k}, v{64+k}, v{64+k} row_ror:8 row_mask:0xf bank_mask:0x3')
    e('s_cbranch_vccz HOK')
    e('s_sub_u32 s50, s50, 1')
    e('s_cbranch_scc0 HPOLL')
    P(4)
    e('HOK:')
    stamp(10)
    for k in range(4): e(f'v_add_f32_dpp v{64+k}, v{68+k}, v{68+k} row_ror:8 row_mask:0xf bank_mask:0xc')
    for k in range(2): e(f'v_add_f32_dpp v{64+k}, v{64+k}, v{64+k} row_shl:4 row_mask:0xf bank_mask:0x5')
    for k in range(2): e(f'v_add_f32_dpp v{64+k}, v{66+k}, v{66+k} row_shr:4 row_mask:0xf bank_mask:0xa')
    e('v_lshlrev_b32 v46, 16, v33')
    for k in range(2): e(f'v_add_f32_dpp v{64+k}, v{64+k}, v{64+k} quad_perm:[2,3,0,1] {D}')
    e('v_and_b32 v47, s48, v33')
    rbf(64, 64); rbf(65, 65)
    e('v_pk_add_f32 v[64:65], v[64:65], v[46:47]')
    e('v_cvt_pk_bf16_f32 v72, v64, v65')
    e(f'ds_write_b32 v29, v72 offset:{HB}')
    e('v_dot2_f32_bf16 v64, v72, v48, 0')
    for d in range(1, 4): e(f'v_mov_b32_dpp v{72+d}, v72 row_ror:{16-4*d} {D}')
    e('v_dot2_f32_bf16 v65, v72, v72, 0')
    def fmf(u, cg):
        b = BB + (u * 2 + cg) * 4; d = 80 + (u * 2 + cg) * 4
        e(f'v_mfma_f32_16x16x32_bf16 v[{d}:{d+3}], v[72:75], v[{b}:{b+3}], 0')
    fmf(0, 0)
    e('v_add_f32_dpp v64, v64, v64 row_ror:8 row_mask:0xf bank_mask:0x3')
    e('v_lshlrev_b32 v32, 16, v32')
    e('v_add_f32_dpp v64, v65, v65 row_ror:8 row_mask:0xf bank_mask:0xc')
    fmf(1, 0)
    e(f'v_add_f32_dpp v64, v64, v64 row_half_mirror {D}')
    fmf(0, 1)
    e(f'v_add_f32_dpp v64, v64, v64 quad_perm:[1,0,3,2] {D}')
    e('v_mov_b32 v65, v64')
    fmf(1, 1)
    e('v_permlane32_swap_b32 v64, v65'); e('v_add_f32 v64, v64, v65')
    e('v_mov_b32 v65, v64'); e('v_add_f32 v80, v80, v89'); e('v_permlane16_swap_b32 v64, v65'); e('v_add_f32 v64, v64, v65')
    e(f'ds_write_b32 v36, v80 offset:{RED}')
    e(f'ds_write_b32 v37, v64 offset:{ST}')
    e('v_add_f32 v84, v84, v93')
    e(f'ds_write_b32 v36, v84 offset:{RED+512}')
    e('s_waitcnt lgkmcnt(0)')
    P(4)
    e('s_barrier')
    e(f'ds_read_b128 v[56:59], v38 offset:{ST}')
    e(f'ds_read_b128 v[52:55], v27 offset:{RED}')
    e(f'ds_read_u16 v61, v34 offset:{HB}')
    e('s_waitcnt lgkmcnt(2)')
    e('v_pk_add_f32 v[56:57], v[56:57], v[58:59]'); e('v_add_f32 v56, v56, v57')
    e('s_waitcnt lgkmcnt(1)')
    e('v_pk_add_f32 v[52:53], v[52:53], v[54:55]')
    e(f'v_add_f32_dpp v56, v56, v56 quad_perm:[1,0,3,2] {D}')
    e('v_add_f32 v52, v52, v53')
    e(f'v_mul_f32_dpp v57, v56, v60 quad_perm:[0,0,0,0] {D}')
    e(f'v_mul_f32_dpp v58, v56, v60 quad_perm:[2,2,2,2] {D}')
    e('v_fma_f32 v58, -v57, v57, v58')
    e('v_max_f32 v58, 0, v58')
    rbf(58, 58)
    e(f'v_add_f32_dpp v52, v52, v52 row_half_mirror {D}')
    e(f'v_add_f32 v58, 0x{EPS:x}, v58'); rbf(58, 58)
    e('v_sqrt_f32 v58, v58')
    rbf(57, 57)
    rbf(58, 58)
    e('v_rcp_f32 v58, v58')
    e('v_fma_f32 v52, -v57, v45, v52')
    e('v_mul_f32 v52, v52, v58'); rbf(52, 52)
    e('v_add_f32 v52, v52, v32'); rbf(52, 52)
    e('v_max_f32 v52, 0, v52'); e('v_mul_f32 v52, v52, v52')
    e('v_cvt_pk_bf16_f32 v52, v52, v52')
    P(4)
    e('s_mov_b32 s40, 0x00ff00ff'); e('s_mov_b32 s41, s40')
    for t in range(4):
        a = 64 + 4 * t
        for d in range(4):
            s = t if d < 2 else 3 - t
            e(f'v_and_b32_dpp v{a+d}, v52, v{4+d} quad_perm:[{s},{s},{s},{s}] {D}')
        if t >= 1:
            c = '0' if t == 1 else 'v[80:83]'
            e(f'v_mfma_f32_16x16x32_bf16 v[80:83], v[{a-4}:{a-1}], v[{108+4*t}:{111+4*t}], {c}')
    e(f'v_mfma_f32_16x16x32_bf16 v[80:83], v[76:79], v[124:127], v[80:83]')
    e('v_permlane32_swap_b32 v80, v82'); e('v_permlane32_swap_b32 v81, v83')
    e(f'v_add_f32_dpp v80, v82, v80 row_ror:8 {D}'); e(f'v_add_f32_dpp v81, v83, v81 row_ror:8 {D}')
    e('v_bfi_b32 v80, v8, v40, v80'); e('v_bfi_b32 v81, v8, v41, v81')
    e('s_mov_b64 exec, s[40:41]')
    e('global_store_dwordx2 v39, v[80:81], s[32:33] sc1')
    e('s_mov_b64 exec, -1')
    stamp(11)
    e('s_cmp_lg_u32 s35, 0')
    e('s_cbranch_scc1 FIN')
    e('s_cmp_ge_u32 s53, 32')
    e('s_cbranch_scc1 FFIN')
    e('s_waitcnt lgkmcnt(0)')
    e('v_lshlrev_b32 v61, 16, v61'); e('v_lshlrev_b32 v35, 16, v35')
    e('s_mov_b32 s42, -1'); e('s_mov_b32 s43, 0xfff'); e('s_mov_b64 vcc, -1')
    for k in range(4): e(f'v_mov_b32 v{104+k}, s{44+k}')
    P(4)
    if fpre: e(f's_sleep {fpre}')
    if fwait: e('s_waitcnt vmcnt(0)')
    e('FPOLL:')
    if fdel: e(f's_sleep {fdel}')
    if mrep & 4: e('s_mov_b64 exec, vcc')
    e('global_load_dwordx4 v[96:99], v42, s[32:33] sc1')
    e('global_load_dwordx4 v[100:103], v43, s[32:33] sc1')
    e('s_and_b64 exec, exec, s[42:43]')
    e('global_load_dwordx4 v[104:107], v44, s[32:33] sc1')
    e('s_mov_b64 exec, -1')
    e('s_waitcnt vmcnt(0)')
    for k in range(12): e(f'v_xor_b32 v{64+k}, s{44+(k&3)}, v{96+k}')
    e('v_or3_b32 v76, v64, v65, v66'); e('v_or3_b32 v77, v67, v68, v69'); e('v_or3_b32 v76, v76, v70, v71'); e('v_or3_b32 v77, v77, v72, v73')
    e('v_or3_b32 v76, v76, v74, v75'); e('v_or_b32 v76, v76, v77'); e('v_and_b32 v76, 0xff, v76')
    e('v_cmp_ne_u32 vcc, 0, v76')
    for k in (0, 2): e(f'v_pk_add_f32 v[{64+k}:{65+k}], v[{64+k}:{65+k}], v[{68+k}:{69+k}]')
    for k in (0, 2): e(f'v_pk_add_f32 v[{64+k}:{65+k}], v[{64+k}:{65+k}], v[{72+k}:{73+k}]')
    e('s_cbranch_vccz FOK')
    e('s_sub_u32 s50, s50, 1')
    e('s_cbranch_scc0 FPOLL')
    P(4)
    e('FOK:')
    stamp(12)
    e('v_permlane32_swap_b32 v64, v66'); e('v_permlane32_swap_b32 v65, v67')
    e('v_pk_add_f32 v[64:65], v[64:65], v[66:67]')
    e('s_mov_b32 s40, 0x000f000f'); e('s_mov_b32 s41, s40')
    e('v_permlane16_swap_b32 v64, v65')
    e('v_add_f32 v64, v64, v65')
    e(f'v_add_f32_dpp v64, v64, v64 row_ror:8 {D}'); e(f'v_add_f32_dpp v64, v64, v64 row_ror:4 {D}')
    rbf(64, 64); e('v_add_f32 v64, v64, v35'); rbf(64, 64); e('v_add_f32 v64, v64, v61')
    e('v_cvt_pk_bf16_f32 v64, v64, v64')
    e('s_mov_b64 exec, s[40:41]')
    e('global_store_short v34, v64, s[28:29]')
    e('s_cmp_lg_u32 s53, 0')
    e('s_cbranch_scc1 FFIN')
    e('s_mov_b64 exec, 1')
    e('v_mov_b32 v65, 0'); e('v_mov_b32 v66, s34')
    e('global_store_dword v65, v66, s[32:33]')
    e('FFIN:')
    stamp(13)
    e('s_branch FIN')
    L2 = []
    for l in L:
        if l.startswith(';@W'):
            site = int(l[3:])
            L2.append('s_mov_b64 exec, 0')
            for k, nm in enumerate(pads[site]):
                L2.append(f's_cmp_eq_u32 s35, {k}'); L2.append(f's_cbranch_scc1 {nm}')
            L2.append(f'WB{site}:'); L2.append('s_mov_b64 exec, -1')
        else: L2.append(l)
    out, npad = pad(L2)
    ad = sizes(out)
    print('size', ad[-1], 'nops', npad, {l.strip()[:-1]: ad[i] for i, l in enumerate(out) if l.strip().endswith(':')})
    out.append('.fill 700, 4, 0xbf810000')
    return wrap('\n'.join(out), 256, 512, LDS, 128), npad

if __name__ == '__main__':
    for spec in sys.argv[1:]:
        name, _, kw = spec.partition(':')
        kw = dict((k, int(v)) for k, v in (p.split('=') for p in kw.split(',') if p))
        s, n = gen(**kw); open(name + '.s', 'w').write(s)
```
